```python
import torch

def _softmax(x, axis=-1):
    return torch.softmax(x, dim=axis)
def _gelu(x):
    return torch.nn.functional.gelu(x, approximate="tanh")
def _silu(x):
    return torch.nn.functional.silu(x)
def _sigmoid(x):
    return torch.sigmoid(x)
def _layernorm(x, axis=-1, eps=1e-5):
    m = x.mean(dim=axis, keepdim=True)
    v = x.var(dim=axis, keepdim=True, unbiased=False)
    return (x - m) / torch.sqrt(v + eps)
def _scatter_add(tgt, idx, src, axis=0):
    return tgt.clone().index_add_(axis, idx, src)
def _segment_sum(src, seg, n):
    out = torch.zeros((n,) + src.shape[1:], dtype=src.dtype)
    return out.index_add_(0, seg, src)
def _pad(x, pw):
    flat = tuple(v for pair in reversed(pw) for v in pair)
    return torch.nn.functional.pad(x, flat)

kernel_name = 'sequential_preLN__linear_attn_block__glu_gated_reglu__prompt'

def setup_inputs():

    _w = (lambda a: (lambda t: t.to(torch.bfloat16) if t.is_floating_point() else t)(torch.as_tensor(a)))
    def _A_setup():
        B, S, D = 1, 2048, 640
        return {
            "x": _w((lambda *s: torch.randn(*s, dtype=torch.bfloat16) * 0.05)(B, S, D)),
            "wqkv": _w((lambda *s: torch.randn(*s, dtype=torch.bfloat16) * 0.05)(D, 3 * D)),
            "wo": _w((lambda *s: torch.randn(*s, dtype=torch.bfloat16) * 0.05)(D, D)),
        }
    _A_in = _A_setup()

    def _B_setup():
        B, S, D, F = 1, 2048, 640, 1536
        return {
            "x": _w((lambda *s: torch.randn(*s, dtype=torch.bfloat16) * 0.05)(B, S, D)),
            "W_gate": _w((lambda *s: torch.randn(*s, dtype=torch.bfloat16) * 0.2)(D, F) * (2.0 / D) ** 0.5),
            "W_up": _w((lambda *s: torch.randn(*s, dtype=torch.bfloat16) * 0.2)(D, F) * (2.0 / D) ** 0.5),
            "W_down": _w((lambda *s: torch.randn(*s, dtype=torch.bfloat16) * 0.2)(F, D) * (1.0 / F) ** 0.5),
        }
    _B_in = _B_setup()

    return {
        "A_x": _A_in["x"],
        "A_wqkv": _A_in["wqkv"],
        "A_wo": _A_in["wo"],
        "B_x": _B_in["x"],
        "B_W_gate": _B_in["W_gate"],
        "B_W_up": _B_in["W_up"],
        "B_W_down": _B_in["W_down"],
    }

def reference(A_x, A_wqkv, A_wo, B_x, B_W_gate, B_W_up, B_W_down):
    def _A_ref(x, wqkv, wo):
        B, S, D = x.shape
        H = 32; Dh = D // H
        qkv = (lambda x, *d: x.permute(*d))((x @ wqkv).reshape(B, S, 3, H, Dh), 2, 0, 3, 1, 4)
        q, k, v = qkv[0], qkv[1], qkv[2]
        phi = lambda t: torch.where(t > 0, t + 1, torch.exp(t)) + 1e-6
        pq, pk = phi(q), phi(k)
        kv = torch.einsum("bhsd,bhse->bhde", pk, v)
        z = torch.einsum("bhsd->bhd", pk)
        num = torch.einsum("bhqd,bhde->bhqe", pq, kv)
        den = torch.einsum("bhqd,bhd->bhq", pq, z)[..., None] + 1e-6
        o = num / den
        return (lambda x, *d: x.permute(*d))(o, 0, 2, 1, 3).reshape(B, S, D) @ wo

    def _B_ref(x, W_gate, W_up, W_down):
        gate = torch.einsum("bsd,df->bsf", x, W_gate)
        up = torch.einsum("bsd,df->bsf", x, W_up)
        gate = gate * (lambda x, dt: x.to(dt))(gate > 0, gate.dtype)
        h = gate * up
        return torch.einsum("bsf,fd->bsd", h, W_down)

    x = A_x
    h = x + _A_ref(_layernorm(x, axis=-1), A_wqkv, A_wo)
    h2 = h + _B_ref(_layernorm(h, axis=-1), B_W_gate, B_W_up, B_W_down)
    return h2
```

```python
import re
TRANS=("v_exp_f32","v_rcp_f32","v_rsq_f32","v_log_f32","v_sqrt_f32")
def regs(op):
    op=op.strip().lstrip('-').strip('|')
    m=re.match(r'^([vas])\[(\d+):(\d+)\]$',op)
    if m: return {(m.group(1),i) for i in range(int(m.group(2)),int(m.group(3))+1)}
    m=re.match(r'^([vas])(\d+)$',op)
    if m: return {(m.group(1),int(m.group(2)))}
    if op=='vcc': return {('s','vcc')}
    if op=='m0': return {('s','m0')}
    return set()
class I:
    def __init__(s,line):
        t=line.split(None,1); s.op=t[0]; rest=t[1] if len(t)>1 else ''
        parts=re.split(r',\s*(?![^\[]*\])',rest)
        ops=[p.split()[0] if p.split() else '' for p in parts]
        R=[regs(o) for o in ops]
        op=s.op; s.mfma=op.startswith('v_mfma'); s.valu=op.startswith('v_') and not s.mfma
        s.mem=op.startswith(('buffer_','global_','ds_')); s.vmem=op.startswith(('buffer_','global_'))
        s.trans=op.startswith(TRANS); s.dot=op.startswith('v_dot2'); s.lds=s.vmem and rest.rstrip().endswith(' lds')
        s.w=set(); s.r=set(); s.c=set(); s.wide=set()
        s.perm=op.startswith('v_permlane') or 'row_' in rest or 'quad_perm' in rest
        s.rdl=op.startswith(('v_readfirstlane','v_readlane'))
        if s.mfma:
            s.w=R[0]; s.r=R[1]|R[2]; s.c=R[3]
        elif s.valu:
            s.w=set(R[0]); s.r=set().union(*R[1:]) if len(R)>1 else set()
            if op.startswith('v_permlane'): s.w=R[0]|R[1]; s.r=R[0]|R[1]
            if op.startswith(('v_fmac','v_dot2c')): s.r|=R[0]
            if s.dot and len(R)>3: s.c=R[3]
        elif s.mem:
            s.r=set().union(*R)
            if ('store_dwordx4' in op or 'store_dwordx3' in op): s.wide=R[0] if op.startswith('buffer') else R[1]
        elif op.startswith('s_') and R: s.w=set(R[0])
        s.n=1
        if op=='s_nop': s.n=int(rest)+1
def need(p,c):
    n=0
    if p.valu:
        vw={x for x in p.w if x[0]!='s'}; sw=p.w-vw
        if c.mfma and vw&(c.r|c.c): n=max(n,2)
        if p.trans and (c.valu or c.mem) and vw&c.r: n=max(n,1)
        if c.rdl and vw&c.r: n=max(n,1)
        if c.perm and vw&c.r: n=max(n,2)
        if c.valu and sw&c.r: n=max(n,2)
        if c.vmem and sw&c.r: n=max(n,5)
        if p.dot and vw&(c.r|c.w|c.c):
            if not (c.op==p.op and vw==c.c and c.w==vw): n=max(n,3)
    if p.mfma:
        if (c.valu and p.w&(c.r|c.w)) or (c.mem and p.w&c.r) or (c.mfma and p.w&c.r): n=max(n,8)
        if c.mfma and p.w&c.c and p.w!=c.c: n=max(n,8)
        if c.mfma and p.w&c.w and not (p.w==c.w and c.c==p.w): n=max(n,8)
        if c.valu and p.c&c.w: n=max(n,3)
    if p.wide and c.valu and p.wide&c.w: n=max(n,2)
    if ('s','m0') in p.w and c.lds: n=max(n,1)
    return n
def pad(lines):
    out=[];hist=[]
    for ln in lines:
        t=ln.split(';')[0].strip()
        if not t or t.endswith(':') or t.startswith('.'): out.append(ln); continue
        c=I(t); d=0; k=0
        for p in reversed(hist):
            k=max(k,need(p,c)-d); d+=p.n
            if d>10: break
        if k>0:
            out.append(f"s_nop {k-1}"); hist.append(I(f"s_nop {k-1}"))
        out.append(ln); hist.append(c); hist=hist[-12:]
    return out
class K:
    def __init__(s,name,grid,block,lds,vgpr=256,acc=256):
        s.name=name;s.grid=grid;s.block=block;s.lds=lds;s.vgpr=vgpr;s.acc=acc;s.L=[]
    def __call__(s,txt):
        for l in txt.split('\n'):
            if l.strip(): s.L.append(l.strip())
    def hdr(s): return f"; @launch kernel={s.name} grid=({s.grid},1,1) block=({s.block},1,1) lds={s.lds}"
    def body(s): return f".globl {s.name}\n.p2align 8\n.type {s.name},@function\n{s.name}:\n"+"\n".join(pad(s.L))
    def desc(s): return f""".p2align 6
.amdhsa_kernel {s.name}
  .amdhsa_next_free_vgpr {s.vgpr}
  .amdhsa_next_free_sgpr 102
  .amdhsa_accum_offset {s.acc}
  .amdhsa_group_segment_fixed_size 0
  .amdhsa_kernarg_size 80
  .amdhsa_user_sgpr_count 2
  .amdhsa_user_sgpr_kernarg_segment_ptr 1
  .amdhsa_system_sgpr_workgroup_id_x 1
.end_amdhsa_kernel"""
def emit(ks):
    return "\n".join([k.hdr() for k in ks]+['.amdgcn_target "amdgcn-amd-amdhsa--gfx950"','.text']+[k.body() for k in ks]+['.section .rodata,"a"']+[k.desc() for k in ks])+"\n"
def q(b,n=4,f='v'): return f"{f}[{b}:{b+n-1}]"
def weave(main,fill,per=2,start=0):
    out=[];fi=0
    for i,m in enumerate(main):
        out.append(m)
        if i>=start:
            for _ in range(per):
                if fi<len(fill): out.append(fill[fi]); fi+=1
    out+=fill[fi:]
    return out
```

```python
from gen import *
def map64(A):
    A("""s_lshr_b32 s27, s26, 3
s_lshl_b32 s28, s25, 2
s_add_u32 s27, s27, s28
s_and_b32 s28, s26, 7
s_lshl_b32 s29, s27, 2
s_add_u32 s29, s29, s24
v_lshlrev_b32 v3, 4, v0""")
def hoffs(A,b):
    A(f"s_mul_i32 s30, s29, 20480\ns_add_u32 s30, s30, {HF}\ns_mul_i32 s31, s28, 5")
    for t in range(5):
        A(f"s_add_u32 s32, s31, {t}\ns_and_b32 s33, s32, 1\ns_lshr_b32 s32, s32, 1\ns_lshl_b32 s32, s32, 7\ns_add_u32 s32, s32, s33\ns_lshl_b32 s32, s32, 3\ns_add_u32 s{b+t}, s32, s30")
def reduce_res(A,ACC,res,P):
    A("s_mul_i32 s30, s24, 20480\nv_add_u32 v4, s30, v3\ns_mul_i32 s30, s24, 5120\nv_add_u32 v5, s30, v3\nv_add_u32 v6, 40960, v5")
    for n in range(20): A(f"ds_write_b128 v4, {q(ACC+4*n)} offset:{1024*n}")
    A("s_waitcnt lgkmcnt(0)\ns_barrier")
    def rd(t):
        for w in range(4): A(f"ds_read_b128 {q(ACC+16*t+4*w)}, v{5+w//2} offset:{(w&1)*20480+1024*t}")
    for t in range(3): rd(t)
    A("s_waitcnt vmcnt(0)")
    for t in range(5):
        b=ACC+16*t
        A(f"s_waitcnt lgkmcnt({min(8,4*(4-t))})")
        if t<2: rd(t+3)
        for p in range(2):
            A(res(2*t+p))
            A(f"""v_pk_add_f32 {q(b+2*p,2)}, {q(b+2*p,2)}, {q(b+4+2*p,2)}
v_pk_add_f32 {q(b+8+2*p,2)}, {q(b+8+2*p,2)}, {q(b+12+2*p,2)}
v_lshlrev_b32 v14, 16, v15
v_and_b32 v15, 0xffff0000, v15
v_pk_add_f32 {q(b+2*p,2)}, {q(b+2*p,2)}, {q(b+8+2*p,2)}
v_pk_add_f32 {q(b+2*p,2)}, {q(b+2*p,2)}, v[14:15]
v_cvt_pk_bf16_f32 v{P+2*t+p}, v{b+2*p}, v{b+2*p+1}""")
def k2():
    A=K("k2_kernel",256,256,81920,512,256)
    entry(A,"L2end"); map64(A)
    A(f"""s_mul_i32 s34, s24, 20480
s_mul_i32 s35, s24, 13440
s_add_u32 s35, s35, {KVS}
s_mul_i32 s36, s27, 81920
s_mul_i32 s37, s24, 5120
s_add_u32 s36, s36, s37
s_mul_i32 s38, s28, 102400
s_add_u32 s37, s37, s38
s_waitcnt lgkmcnt(0)""")
    srd(A,40,22,0x2000000); srd(A,44,4,2621440)
    for n in range(14):
        if n%4==0: A(f"s_add_u32 m0, s34, {n*1024}\ns_add_u32 s38, s35, {n*1024}")
        A(f"buffer_load_dwordx4 v3, s[40:43], s38 offen offset:{(n%4)*1024} lds")
    for m in range(4):
        for s in range(5):
            if s%4==0: A(f"s_add_u32 s38, s36, {PQ+m*20480+s*1024}")
            A(f"buffer_load_dwordx4 {q(20*m+4*s,4,'a')}, v3, s[40:43], s38 offen offset:{(s%4)*1024}")
    for s in range(5):
        for t in range(5): A(f"s_add_u32 s38, s37, {FWO+t*20480+s*1024}\nbuffer_load_dwordx4 {q(80+20*s+4*t,4,'a')}, v3, s[40:43], s38 offen")
    hd=lambda a:{x//5 for x in range(4*a,4*a+4)}
    G=[(0,3,(0,1)),(3,4,(1,2,3)),(7,3,(3,4))]
    frags=[('z',gi,T) for gi,g in enumerate(G) for T in g[2]]
    for t in range(10): frags+=[('t',t,T) for T in range(5) if hd(t)&(hd(2*T)|hd(2*T+1))]
    assert len(frags)==25
    FR,ST,D,DEN,RC,OF=16,92,116,156,4,176
    halves=[];n=0
    for f,(k,p,T) in enumerate(frags):
        for h in range(2):
            qn=2*T+h
            live = (hd(qn)&set().union(*[hd(G[p][0]+r) for r in range(G[p][1])])) if k=='z' else hd(qn)&hd(p)
            halves.append((FR+4*f+2*h,k,p,qn,n if live else None)); n+=bool(live)
    NR=n; assert NR<=40
    A("s_add_u32 s39, s34, 14336\nv_mov_b32 v4, s39\nv_mov_b32 v8, 0\nv_mov_b32 v9, 0\nv_mov_b32 v10, 0\nv_mov_b32 v11, 0\nds_write_b128 v4, v[8:11]")
    A("v_and_b32 v8, 3, v2\nv_lshrrev_b32 v9, 2, v2\nv_lshl_add_u32 v8, v8, 2, v9")
    for gi,g in enumerate(G): A(f"v_add_u32 v9, {4*g[0]}, v8\nv_mul_u32_u24 v9, 52, v9\nv_lshrrev_b32 v{5+gi}, 8, v9")
    for qn in range(10):
        A(f"""v_add_u32 v8, {4*qn}, v1
v_mul_u32_u24 v9, 52, v8
v_lshrrev_b32 v9, 8, v9
v_mul_u32_u24 v10, 20, v9
v_sub_u32 v10, v2, v10
v_mul_u32_u24 v8, 336, v8
v_add_u32 v8, s34, v8
v_add_u32 v11, 320, v8""")
        for d,k,p,q_,n in halves:
            if q_!=qn or n is None: continue
            if k=='z': A(f"v_cmp_eq_u32 vcc, v9, v{5+p}\nv_cndmask_b32 v{ST+4*n}, v4, v11, vcc")
            else: A(f"v_add_u32 v12, {16*p}, v10\nv_cmp_gt_u32 vcc, 20, v12\nv_lshl_add_u32 v12, v12, 4, v8\nv_cndmask_b32 v{ST+4*n}, v4, v12, vcc")
    hoffs(A,50)
    A(f"""v_mul_u32_u24 v14, 1280, v2
v_lshl_add_u32 v14, v1, 3, v14
s_mul_i32 s30, s29, 20480
s_mul_i32 s31, s28, 160
s_add_u32 s30, s30, s31
s_waitcnt vmcnt(45) lgkmcnt(0)"""); stamp(A,1)
    if STAMP: A("s_waitcnt lgkmcnt(0)")
    for t in range(5): A(f"buffer_load_dwordx2 {q(180+2*t,2,'a')}, v14, s[44:47], s30 offen offset:{32*t}")
    W=12
    for n in range(W): A(f"ds_read_b128 {q(ST+4*n)}, v{ST+4*n}")
    for d,k,p,qn,n in halves:
        if n is None: A(f"v_mov_b32 v{d}, 0\nv_mov_b32 v{d+1}, 0"); continue
        A(f"s_waitcnt lgkmcnt({min(W-1,NR-1-n)})\nv_cvt_pk_bf16_f32 v{d}, v{ST+4*n}, v{ST+4*n+1}\nv_cvt_pk_bf16_f32 v{d+1}, v{ST+4*n+2}, v{ST+4*n+3}")
        if n+W<NR: A(f"ds_read_b128 {q(ST+4*(n+W))}, v{ST+4*(n+W)}")
    M=[];V=[]
    for m in range(4):
        last={};first={}
        for f,(k,p,T) in enumerate(frags):
            d=DEN+4*p if k=='z' else D+4*p
            M.append((f"s_waitcnt vmcnt({45-5*m})\n" if f==0 else "")+mf(q(d),q(FR+4*f),q(20*m+4*T,4,'a'),None if (k,p) in last else "0"))
            first.setdefault((k,p),len(M)-1); last[(k,p)]=len(M)-1
        for gi,g in enumerate(G):
            for r in range(g[1]):
                V.append((last[('z',gi)]+3,first[('z',gi)]+25,f"v_add_f32 v{RC+g[0]+r}, 0x358637bd, v{DEN+4*gi+r}"))
            for r in range(g[1]):
                V.append((last[('z',gi)]+3,first[('z',gi)]+25,f"v_rcp_f32 v{RC+g[0]+r}, v{RC+g[0]+r}"))
        for t in range(10):
            for r in range(4): V.append((last[('t',t)]+3,first[('t',t)]+25,f"v_mul_f32 v{D+4*t+r}, v{D+4*t+r}, v{RC+t}"))
            for p in range(2): V.append((last[('t',t)]+3,first[('t',t)]+25,f"v_cvt_pk_bf16_f32 v{OF+20*m+2*t+p}, v{D+4*t+2*p}, v{D+4*t+2*p+1}"))
    vi=0
    for i,m in enumerate(M):
        while any(v[1]<=i for v in V[vi:]): A(V[vi][2]); vi+=1
        A(m); c=0
        while vi<len(V) and V[vi][0]<=i and c<4: A(V[vi][2]); vi+=1; c+=1
    for v in V[vi:]: A(v[2])
    ACC=16
    for s in range(5):
        A(f"s_waitcnt vmcnt({25-5*s})")
        for m in range(4):
            for t in range(5): A(mf(q(ACC+20*m+4*t),q(80+20*s+4*t,4,'a'),q(OF+20*m+4*s),None if s else "0"))
    stamp(A,2)
    if STAMP: A("s_waitcnt lgkmcnt(0)")
    P=100
    reduce_res(A,ACC,lambda k:f"v_accvgpr_read_b32 v15, a{180+k}",P)
    for t in range(5): A(f"buffer_store_dwordx2 {q(P+2*t,2)}, v3, s[40:43], s{50+t} offen")
    A("v_mov_b32 v8, 0\nv_mov_b32 v9, 0\nv_mov_b32 v10, 0x3f803f80")
    for k in range(10): A(f"v_dot2_f32_bf16 v8, v{P+k}, v10, v8\nv_dot2_f32_bf16 v9, v{P+k}, v{P+k}, v9")
    gsum(A,8,10); gsum(A,9,11)
    A(f"""v_cmp_gt_u32 vcc, 16, v0
v_mov_b32 v12, {OOB}
s_lshl_b32 s30, s29, 10
s_lshr_b32 s31, s28, 1
s_lshl_b32 s31, s31, 8
s_add_u32 s30, s30, s31
s_and_b32 s31, s28, 1
s_lshl_b32 s31, s31, 3
s_add_u32 s30, s30, s31
s_add_u32 s30, s30, {HST}
v_cndmask_b32 v12, v12, v3, vcc
buffer_store_dwordx2 v[8:9], v12, s[40:43], s30 offen""")
    stamp_out(A,1,"L2end")
    A("L2end:\ns_endpgm")
    return A
def k3():
    A=K("k3_kernel",256,512,163840); SL=40960
    entry(A,"L3end")
    A(f"""s_lshr_b32 s27, s26, 3
s_lshr_b32 s28, s25, 1
s_lshl_b32 s28, s28, 2
s_add_u32 s27, s27, s28
s_and_b32 s28, s25, 1
s_lshl_b32 s28, s28, 3
s_and_b32 s29, s26, 7
s_add_u32 s28, s28, s29
v_lshlrev_b32 v3, 4, v0
s_mov_b32 s37, 0
s_mov_b32 s49, {SL}
s_cmp_lt_u32 s24, 4
s_cbranch_scc1 L3comp
s_sub_u32 s32, s24, 4
s_mul_i32 s32, s32, 5
s_lshl_b32 s38, s32, 11
s_lshl_b32 s33, s27, 3
s_mul_i32 s34, s28, 6""")
    for m in range(5):
        A(f"""s_add_u32 s35, s32, {m}
s_sub_u32 s36, s35, 8
s_mov_b32 s39, {FG}
s_cmp_ge_u32 s35, 14
s_cselect_b32 s39, {FU}, s39
s_cselect_b32 s48, 6, 0
s_sub_u32 s36, s36, s48
s_cmp_ge_u32 s36, 3
s_addc_u32 s36, s36, 0
s_cmp_eq_u32 s36, 6
s_cselect_b32 s36, 3, s36
s_add_u32 s36, s36, s34
s_add_u32 s48, s35, s33
s_cmp_lt_u32 s35, 8
s_cselect_b32 s36, s48, s36
s_cselect_b32 s39, {HF}, s39
s_mul_i32 s36, s36, 20480
s_add_u32 s{50+m}, s36, s39""")
    A(f"""v_cmp_le_u32 vcc, 24, v0
v_mov_b32 v4, {6144-384}
v_cndmask_b32 v4, 0, v4, vcc
v_add_u32 v4, v4, v3
s_mul_i32 s35, s28, 384
s_add_u32 s35, s35, {CSP}
s_waitcnt lgkmcnt(0)""")
    srd(A,40,22,0x2000000)
    for k in range(5): A(f"buffer_load_dwordx4 {q(8+4*k)}, v4, s[40:43], s35 offen\ns_add_u32 s35, s35, 12288")
    A("""v_mov_b32 v5, v3
L3ld:
s_cmp_lt_u32 s37, 4
s_cbranch_scc1 L3is
s_cmp_lg_u32 s37, 4
s_cbranch_scc1 L3w
s_waitcnt vmcnt(30)
s_barrier
L3w:
s_waitcnt vmcnt(20)
s_barrier
L3is:""")
    for m in range(5): A(f"s_add_u32 m0, s38, {2048*m}\nbuffer_load_dwordx4 v5, s[40:43], s{50+m} offen lds\nbuffer_load_dwordx4 v5, s[40:43], s{50+m} offen offset:1024 lds")
    A(f"""v_add_u32 v5, 2048, v5
s_add_u32 s37, s37, 1
s_and_b32 s48, s37, 3
s_cselect_b32 s48, s49, {-3*SL}
s_add_u32 s38, s38, s48
s_cmp_lt_u32 s37, 10
s_cbranch_scc1 L3ld
s_waitcnt vmcnt(20)
s_barrier""")
    for k in range(1,5): A(f"v_pk_add_f32 v[8:9], v[8:9], {q(8+4*k,2)}\nv_pk_add_f32 v[10:11], v[10:11], {q(10+4*k,2)}")
    A("""s_waitcnt vmcnt(10)
s_barrier
s_waitcnt vmcnt(0)
s_barrier
ds_write_b128 v3, v[8:11]
s_waitcnt lgkmcnt(0)
s_barrier
s_endpgm""")
    F=[32,72]; ACC=128; VH,VW=4,5
    A(f"""L3comp:
s_lshr_b32 s30, s24, 1
s_and_b32 s31, s24, 1
s_lshl_b32 s32, s30, 13
v_add_u32 v{VH}, s32, v3
s_mul_i32 s32, s31, 6144
s_add_u32 s32, s32, 16384
v_add_u32 v{VW}, s32, v3
s_lshl_b32 s33, s27, 3
s_lshl_b32 s32, s30, 2
s_add_u32 s33, s33, s32
s_lshl_b32 s34, s33, 10
s_add_u32 s34, s34, {HST}
s_waitcnt lgkmcnt(0)""")
    srd(A,40,22,0x2000000)
    for m in range(4): A(f"buffer_load_dwordx4 {q(8+4*m)}, v3, s[40:43], s34 offen offset:{1024*m}")
    for r in range(ACC,ACC+96): A(f"v_mov_b32 v{r}, 0")
    A(f"""s_mul_i32 s33, s33, 48
s_mul_i32 s32, s28, 3
s_add_u32 s33, s33, s32
s_lshl_b32 s33, s33, 10
s_add_u32 s33, s33, {HH}
s_lshl_b32 s32, s31, 11
s_add_u32 s50, s33, s32
s_lshl_b32 s32, s31, 3
s_add_u32 s51, s33, s32
s_add_u32 s51, s51, 1024
s_lshl_b32 s32, s31, 8
v_lshl_add_u32 v6, v1, 4, s32
s_lshl_b32 s32, s31, 6
v_lshl_add_u32 v7, v1, 4, s32
s_mov_b32 s52, 0x3acccccd
s_waitcnt vmcnt(0)""")
    for m in range(4):
        b=8+4*m
        A(f"v_pk_add_f32 {q(b,2)}, {q(b,2)}, {q(b+2,2)}"); gsum(A,b,b+2); gsum(A,b+1,b+3)
        A(f"""v_mul_f32 v{b}, s52, v{b}
v_mul_f32 v{b+1}, s52, v{b+1}
v_fma_f32 v{b+1}, -v{b}, v{b}, v{b+1}
v_max_f32 v{b+1}, 0, v{b+1}
v_add_f32 v{b+1}, 0x3727c5ac, v{b+1}
v_rcp_f32 v{b+1}, v{b+1}
v_xor_b32 v{b}, 0x80000000, v{b}""")
    def reads(k,s):
        L=[f"ds_read_b128 {q(F[k]+4*m)}, v{VH} offset:{2048*m+1024*s}" for m in range(4)]
        L+=[f"ds_read_b128 {q(F[k]+16+4*n)}, v{VW} offset:{2048*(n%3)+12288*(n//3)+1024*s}" for n in range(6)]
        return L
    def mms(k): return [mf(q(ACC+24*m+4*n),q(F[k]+16+4*n),q(F[k]+4*m)) for n in range(6) for m in range(4)]
    A("s_barrier"); stamp(A,1)
    for l in reads(0,0): A(l)
    A(".p2align 6\nL3m:\ns_waitcnt lgkmcnt(0)")
    for l in weave(mms(0),reads(1,1),1): A(l)
    A(f"s_add_u32 s37, s37, 1\ns_and_b32 s48, s37, 3\ns_cselect_b32 s48, s49, {-3*SL}\nv_add_u32 v{VH}, s48, v{VH}\nv_add_u32 v{VW}, s48, v{VW}\ns_waitcnt lgkmcnt(0)\ns_barrier")
    for l in weave(mms(1),reads(0,0),1): A(l)
    A("s_cmp_lt_u32 s37, 10\ns_cbranch_scc1 L3m"); stamp(A,2)
    A("s_waitcnt lgkmcnt(0)")
    for n in range(6): A(f"ds_read_b128 {q(32+4*n)}, v{7 if n%3==2 else 6} offset:{64*(n%3)+384*(n//3)}")
    A("s_waitcnt lgkmcnt(0)")
    for m in range(4):
        st=q(8+4*m,2); d=64+6*m
        for n in range(3):
            for p in range(2):
                g=ACC+24*m+4*n+2*p; u=g+12
                A(f"""v_pk_fma_f32 {q(g,2)}, {st}, {q(32+4*n+2*p,2)}, {q(g,2)} op_sel_hi:[0,1,1]
v_pk_fma_f32 {q(u,2)}, {st}, {q(44+4*n+2*p,2)}, {q(u,2)} op_sel_hi:[0,1,1]
v_max_f32 v{g}, 0, v{g}
v_max_f32 v{g+1}, 0, v{g+1}
v_pk_mul_f32 {q(u,2)}, {q(u,2)}, {st} op_sel:[0,1]
v_pk_mul_f32 {q(g,2)}, {q(g,2)}, {q(u,2)}
v_cvt_pk_bf16_f32 v{d+2*n+p}, v{g}, v{g+1}""")
        A(f"buffer_store_dwordx4 {q(d)}, v3, s[40:43], s50 offen\nbuffer_store_dwordx2 {q(d+4,2)}, v3, s[40:43], s51 offen\ns_add_u32 s50, s50, 49152\ns_add_u32 s51, s51, 49152")
    stamp_out(A,2,"L3end")
    A("L3end:\ns_endpgm")
    return A
def k4():
    A=K("k4_kernel",256,256,81920,512,256)
    entry(A,"L4end"); map64(A)
    A(f"""s_mul_i32 s34, s24, 12288
s_mul_i32 s35, s27, {4*49152}
s_add_u32 s35, s35, s34
s_mul_i32 s36, s28, {5*49152}
s_add_u32 s36, s36, s34
v_add_u32 v7, 4096, v3
v_add_u32 v8, 8192, v3""")
    for m in range(4): A(f"s_add_u32 s{60+m}, s35, {HH+m*49152}")
    for t in range(5): A(f"s_add_u32 s{64+t}, s36, {FD+t*49152}")
    A("s_waitcnt lgkmcnt(0)")
    srd(A,40,22,0x2000000); srd(A,44,18,2621440)
    def loads(s): return [f"buffer_load_dwordx4 {q(36*(s%7)+4*n,4,'a')}, v{(3,7,8)[s//4]}, s[40:43], s{60+n} offen offset:{(s%4)*1024}" for n in (0,4,5,6,7,8,1,2,3)]
    for s in range(6):
        for l in loads(s): A(l)
    hoffs(A,50)
    ACC=16
    for s in range(12):
        A(f"s_waitcnt vmcnt({9*min(5,11-s)+(5 if s>6 else 0)})")
        if s==0: stamp(A,1)
        b=36*(s%7)
        M=[mf(q(ACC+20*m+4*t),q(b+16+4*t,4,'a'),q(b+4*m,4,'a'),None if s else "0") for m in range(4) for t in range(5)]
        fill=loads(s+6) if s<6 else [f"buffer_load_dwordx2 {q(112+2*t,2)}, v3, s[40:43], s{50+t} offen" for t in range(5)] if s==6 else []
        for l in weave(M,fill,1): A(l)
    stamp(A,2)
    if STAMP: A("s_waitcnt lgkmcnt(0)")
    P=100
    reduce_res(A,ACC,lambda k:f"v_mov_b32 v15, v{112+k}",P)
    A(f"""v_mul_u32_u24 v14, 1280, v2
v_lshl_add_u32 v14, v1, 3, v14
s_mul_i32 s30, s29, 20480
s_mul_i32 s31, s28, 160
s_add_u32 s30, s30, s31""")
    for t in range(5): A(f"buffer_store_dwordx2 {q(P+2*t,2)}, v14, s[44:47], s30 offen offset:{32*t}")
    stamp_out(A,3,"L4end")
    A("L4end:\ns_endpgm")
    return A
```

```python
import sys
from asmlib import *
STAMP = 'stamp' in sys.argv
PQ,KVS,CSP,HST,HF,HH,FWO,FG,FU,FD = 0,0x300000,0x320000,0x340000,0x400000,0x800000,0x1000000,0x1100000,0x1300000,0x1500000
OOB=0x40000000
MF="v_mfma_f32_16x16x32_bf16"
def mf(d,a,b,c=None):
    return f"{MF} {d}, {a}, {b}, {d if c is None else c}"
def stamp(A,i):
    if STAMP: A(f"s_memrealtime s[{90+2*i}:{91+2*i}]")
def stamp_out(A,k,lab):
    if not STAMP: return
    A(f"""s_waitcnt vmcnt(0)
s_memrealtime s[96:97]
s_cmp_lg_u32 s24, 0
s_cbranch_scc1 {lab}
s_waitcnt lgkmcnt(0)
s_add_u32 s22, s22, {0x8000000+k*32768}
s_addc_u32 s23, s23, 0
s_lshl_b32 s26, s2, 5""")
    for i in range(8): A(f"v_mov_b32 v{4+i}, s{90+i}")
    A("v_mov_b32 v1, s26\nglobal_store_dwordx4 v1, v[4:7], s[22:23]\nglobal_store_dwordx4 v1, v[8:11], s[22:23] offset:16")
def entry(A,end):
    A(f"s_cmp_ge_u32 s2, 256\ns_cbranch_scc1 {end}")
    stamp(A,0)
    A("""s_load_dwordx16 s[4:19], s[0:1], 0
s_load_dwordx4 s[20:23], s[0:1], 64
v_lshrrev_b32 v1, 6, v0
v_and_b32 v0, 63, v0
v_readfirstlane_b32 s24, v1
v_lshrrev_b32 v1, 4, v0
v_and_b32 v2, 15, v0
s_and_b32 s25, s2, 7
s_lshr_b32 s26, s2, 3""")
def srd(A,b,p,n,off=None):
    if off is None: A(f"s_mov_b32 s{b}, s{p}\ns_mov_b32 s{b+1}, s{p+1}")
    else: A(f"s_add_u32 s{b}, s{p}, {off}\ns_addc_u32 s{b+1}, s{p+1}, 0")
    A(f"s_mov_b32 s{b+2}, {n}\ns_mov_b32 s{b+3}, 0x20000")
def gsum(A,r,t):
    for p in ("32","16"):
        A(f"v_mov_b32 v{t}, v{r}\nv_permlane{p}_swap_b32 v{r}, v{t}\nv_add_f32 v{r}, v{r}, v{t}")
PAIRS=[(a,b) for a in range(5) for b in range(5) if {x//5 for x in range(4*a,4*a+4)}&{x//5 for x in range(4*b,4*b+4)}]

def k1():
    A=K("k1_kernel",256,512,147456); SL=36864
    entry(A,"L1end")
    A("""s_cmp_ge_u32 s26, 24
s_cbranch_scc1 L1help
s_mul_i32 s27, s26, 43
s_lshr_b32 s27, s27, 8
s_mul_i32 s28, s27, 6
s_sub_u32 s28, s26, s28
s_lshr_b32 s29, s25, 1
s_lshl_b32 s29, s29, 2
s_add_u32 s27, s27, s29
s_and_b32 s29, s25, 1
s_lshl_b32 s30, s29, 2
s_add_u32 s30, s30, s28
s_lshl_b32 s31, s29, 1
s_add_u32 s31, s31, s28
s_sub_u32 s31, s31, 4
s_cmp_lt_u32 s24, 4
s_cbranch_scc1 L1comp""")
    A("""s_sub_u32 s32, s24, 4
s_and_b32 s33, s32, 1
s_lshl_b32 s33, s33, 2
v_add_u32 v3, s33, v1
v_and_b32 v4, 7, v0
v_xor_b32 v3, v3, v4
v_lshrrev_b32 v4, 3, v0
v_mul_u32_u24 v4, 1280, v4
v_lshl_add_u32 v10, v3, 4, v4
s_mul_i32 s34, s30, 160
s_add_u32 s34, s34, 1280
s_mul_i32 s35, s31, 320
s_cmp_lt_u32 s28, 4
s_cselect_b32 s34, s34, s35
s_cselect_b32 s35, 1120, 0
s_mul_i32 s36, s32, 61440
s_add_u32 s34, s34, s36
s_lshl_b32 s36, s27, 7
s_lshl_b32 s37, s32, 3
s_add_u32 s36, s36, s37
s_mul_i32 s36, s36, 1280
v_mov_b32 v9, s35""")
    for m in range(5):
        A(f"""v_add_u32 v3, {64*m}, v0
v_mul_u32_u24 v4, 3277, v3
v_lshrrev_b32 v4, 16, v4
v_mul_u32_u24 v5, 20, v4
v_sub_u32 v5, v3, v5
v_lshrrev_b32 v6, 2, v4
v_and_b32 v6, 2, v6
v_xor_b32 v5, v5, v6
v_cmp_le_u32 vcc, 10, v5
v_mul_u32_u24 v4, 3840, v4
v_lshl_add_u32 v4, v5, 4, v4
v_cndmask_b32 v6, 0, v9, vcc
v_add_u32 v{11+m}, v4, v6""")
    A("""s_lshl_b32 s38, s32, 10
s_mul_i32 s39, s32, 5120
s_add_u32 s39, s39, 16384
s_mov_b32 s37, 0
s_waitcnt lgkmcnt(0)""")
    srd(A,40,4,2621440); srd(A,44,6,2457600)
    A("""L1ld:
s_cmp_lt_u32 s37, 4
s_cbranch_scc1 L1is
s_cmp_lg_u32 s37, 4
s_cbranch_scc1 L1w
s_waitcnt vmcnt(27)
s_barrier
L1w:
s_waitcnt vmcnt(18)
s_barrier
L1is:""")
    for m in range(5):
        A(f"s_add_u32 m0, s39, {m*1024}\ns_add_u32 s48, s36, {m*40960}\nbuffer_load_dwordx4 v{11+m}, s[44:47], s34 offen lds")
        if m<4: A(f"s_add_u32 m0, s38, {m*4096}\ns_nop 0\nbuffer_load_dwordx4 v10, s[40:43], s48 offen lds")
    A(f"""s_add_u32 s36, s36, 128
s_add_u32 s34, s34, 245760
s_add_u32 s37, s37, 1
s_mov_b32 s49, {SL}
s_and_b32 s48, s37, 3
s_cselect_b32 s48, s49, {-3*SL}
s_add_u32 s38, s38, s48
s_add_u32 s39, s39, s48
s_cmp_lt_u32 s37, 10
s_cbranch_scc1 L1ld
s_waitcnt vmcnt(18)
s_barrier
s_waitcnt vmcnt(9)
s_barrier
s_waitcnt vmcnt(0)
s_barrier
s_barrier
s_endpgm""")
    XA0,XA1,WE,WO,ONE,ACC,RS,GR,CS,AD=4,5,6,7,28,128,208,216,224,236
    F=[32,80]
    A(f"""L1comp:
s_lshl_b32 s32, s24, 12
v_lshrrev_b32 v3, 1, v2
v_xor_b32 v3, v3, v1
v_lshlrev_b32 v3, 4, v3
v_lshl_add_u32 v3, v2, 7, v3
v_add_u32 v{XA0}, s32, v3
v_xor_b32 v{XA1}, 64, v{XA0}
v_lshrrev_b32 v3, 2, v2
v_lshl_add_u32 v3, v1, 3, v3
v_mul_u32_u24 v3, 320, v3
v_and_b32 v8, 3, v0
v_lshl_add_u32 v3, v8, 3, v3
v_add_u32 v3, 16384, v3
v_and_b32 v8, 1, v1
v_lshlrev_b32 v8, 5, v8
v_add_u32 v{WE}, v3, v8
v_sub_u32 v{WO}, v3, v8
s_waitcnt lgkmcnt(0)""")
    srd(A,40,22,0x2000000)
    A("s_mul_i32 s33, s30, 6720\ns_add_u32 s33, s33, %d"%KVS); srd(A,44,22,6720,"s33")
    A(f"""s_lshl_b32 s34, s30, 2
v_mov_b32 v9, s34
s_cmp_ge_u32 s28, 4
s_cbranch_scc1 L1nz
s_cmp_lg_u32 s24, 0
s_cbranch_scc1 L1nz
v_mov_b32 v10, 1
s_mov_b64 exec, 1
global_atomic_add v11, v9, v10, s[20:21] sc0
s_waitcnt vmcnt(0)
v_readfirstlane_b32 s35, v11
s_mov_b64 exec, -1
s_cmp_lg_u32 s35, 0
s_cbranch_scc1 L1nz
v_lshlrev_b32 v11, 4, v0
v_mov_b32 v12, 0
v_mov_b32 v13, 0
v_mov_b32 v14, 0
v_mov_b32 v15, 0
v_add_u32 v16, 4096, v11""")
    for n in range(7): A(f"buffer_store_dwordx4 v[12:15], v{11 if n<4 else 16}, s[44:47], 0 offen offset:{(n%4)*1024} sc1")
    A("""s_waitcnt vmcnt(0)
s_mov_b64 exec, 1
global_store_dword v9, v10, s[20:21] offset:128 sc1
s_mov_b64 exec, -1
L1nz:""")
    for r in range(4): A(f"v_mov_b32 v{ONE+r}, 0x3f803f80")
    for r in range(ACC,AD): A(f"v_mov_b32 v{r}, 0")
    A("s_lshl_b32 s33, s24, 13\ns_add_u32 s33, s33, 4096\nv_lshl_add_u32 v10, v0, 4, s33\nv_add_u32 v10, 6784, v10")
    for dt in range(5):
        A(f"""v_add_u32 v11, {4*dt}, v1
v_mul_u32_u24 v12, 52, v11
v_lshrrev_b32 v12, 8, v12
v_mul_u32_u24 v12, 20, v12
v_sub_u32 v12, v2, v12
v_mul_u32_u24 v11, 336, v11
v_add_u32 v11, s33, v11
v_cmp_eq_u32 vcc, 0, v2
v_add_u32 v13, 320, v11
v_cndmask_b32 v{AD+13+dt}, v10, v13, vcc""")
        for n,(a,b) in enumerate(PAIRS):
            if a==dt: A(f"v_add_u32 v13, {16*b}, v12\nv_cmp_gt_u32 vcc, 20, v13\nv_lshl_add_u32 v13, v13, 4, v11\nv_cndmask_b32 v{AD+n}, v10, v13, vcc")
    def reads(k,s):
        L=[f"ds_read_b128 {q(F[k]+4*rt)}, v{XA1 if s else XA0} offset:{2048*rt}" for rt in range(2)]
        for t in range(10):
            for h in range(2): L.append(f"ds_read_b64_tr_b16 {q(F[k]+8+4*t+2*h,2)}, v{WO if t&1 else WE} offset:{32*t+10240*s+1280*h}")
        return L
    def mms(k,isq,w):
        L=[]; x=lambda rt:q(F[k]+4*rt); W=lambda t:q(F[k]+8+4*t)
        for rt in range(2):
            L.append(mf(q(GR+4*rt),x(rt),x(rt)))
            L.append(mf(q(RS+4*rt),q(ONE),x(rt)) if isq else mf(q(RS+4*rt),x(rt),q(ONE)))
        for t in range(10):
            for rt in range(2): L.append(mf(q(ACC+40*rt+4*t),W(t),x(rt)) if isq else mf(q(ACC+40*rt+4*t),x(rt),W(t)))
            if t%4==w: L.append(mf(q(CS+4*(t//4)),W(t),q(ONE)))
        return L
    A(f"s_mov_b32 s37, 0\ns_mov_b32 s49, {SL}\ns_barrier"); stamp(A,1)
    for l in reads(0,0): A(l)
    A("s_cmp_ge_u32 s28, 4\ns_cselect_b32 s34, 4, 0\ns_add_u32 s34, s34, s24")
    for v in range(7): A(f"s_cmp_eq_u32 s34, {v}\ns_cbranch_scc1 L1m{v}")
    for v in (7,6,5,4,3,2,1,0):
        isq,w=v>=4,v&3
        A(f".p2align 6\nL1m{v}:\ns_waitcnt lgkmcnt(0)")
        for l in weave(mms(0,isq,w),reads(1,1)): A(l)
        A(f"s_add_u32 s37, s37, 1\ns_and_b32 s48, s37, 3\ns_cselect_b32 s48, s49, {-3*SL}")
        for r in (XA0,XA1,WE,WO): A(f"v_add_u32 v{r}, s48, v{r}")
        A("s_waitcnt lgkmcnt(0)\ns_barrier")
        for l in weave(mms(1,isq,w),reads(0,0)): A(l)
        A(f"s_cmp_lt_u32 s37, 10\ns_cbranch_scc1 L1m{v}")
        if v: A("s_branch L1epi")
    A("L1epi:\ns_nop 7"); stamp(A,2)
    A("s_lshl_b32 s33, s24, 6\nv_lshl_add_u32 v8, v1, 4, s33\ns_waitcnt lgkmcnt(0)")
    for n in range(3): A(f"ds_write_b128 v8, {q(CS+4*n)} offset:{256*n}")
    A("s_mov_b32 s50, 0x3acccccd\ns_mov_b32 s51, 0x3fb8aa3b\ns_mov_b32 s52, 0x358637bd\ns_mov_b32 s53, 0x358637bd\ns_cmp_ge_u32 s28, 4\ns_cbranch_scc1 L1q")
    def stats(rs,sq,rl):
        A(f"""v_mul_f32 v{rs}, s50, v{rs}
v_mul_f32 v{sq}, s50, v{sq}
v_fma_f32 v{sq}, -v{rs}, v{rs}, v{sq}
v_max_f32 v{sq}, 0, v{sq}
v_add_f32 v{sq}, 0x3727c5ac, v{sq}
v_rsq_f32 v{sq}, v{sq}
v_xor_b32 v{rs}, 0x80000000, v{rs}
v_mul_f32 v{rl}, s51, v{sq}""")
    def phi(a,t,rstd,rl,sel):
        A(f"""v_pk_mul_f32 {q(t,2)}, {q(a,2)}, {rl} {sel[0]}
v_pk_fma_f32 {q(a,2)}, {q(a,2)}, {rstd}, s[52:53] {sel[1]}
v_exp_f32_e64 v{t}, v{t} clamp
v_exp_f32_e64 v{t+1}, v{t+1} clamp
v_max_f32 v{a}, s52, v{a}
v_max_f32 v{a+1}, s52, v{a+1}
v_pk_add_f32 {q(a,2)}, {q(a,2)}, {q(t,2)}""")
    A("global_load_dword v27, v9, s[20:21] offset:128 sc1\nv_mul_u32_u24 v8, 80, v1")
    for rt in range(2):
        for r in range(4): A(f"ds_bpermute_b32 v{GR+4*rt+r}, v8, v{GR+4*rt+r} offset:{4*r}")
    A("s_waitcnt lgkmcnt(0)\ns_barrier\nv_lshlrev_b32 v8, 2, v2")
    for t in range(10): A(f"ds_read_b32 v{32+t}, v8 offset:{64*t}")
    for r in range(8): stats(RS+r,GR+r,CS+r)
    A("s_waitcnt lgkmcnt(0)")
    FR=48
    for t in range(10):
        cs=q(32+(t&~1),2); o=t&1
        for rt in range(2):
            for p in range(2):
                a=ACC+40*rt+4*t+2*p; rr=4*rt+2*p
                A(f"v_pk_fma_f32 {q(a,2)}, {q(RS+rr,2)}, {cs}, {q(a,2)} op_sel:[0,{o},0] op_sel_hi:[1,{o},1]")
                if t<5: phi(a,10+2*p,q(GR+rr,2),q(CS+rr,2),("",""))
                else: A(f"v_pk_mul_f32 {q(a,2)}, {q(a,2)}, {q(GR+rr,2)}")
                A(f"v_cvt_pk_bf16_f32 v{FR+4*t+2*rt+p}, v{a}, v{a+1}")
    for n,(a,b) in enumerate(PAIRS): A(mf(q(ACC+4*n),q(FR+4*a),q(FR+20+4*b),"0"))
    for a in range(5): A(mf(q(ACC+52+4*a),q(FR+4*a),q(ONE),"0"))
    for n in range(18): A(f"ds_write_b128 v{AD+n}, {q(ACC+4*n)}")
    A("""L1poll:
s_waitcnt vmcnt(0)
v_readfirstlane_b32 s35, v27
s_cmp_lg_u32 s35, 0
s_cbranch_scc1 L1go
global_load_dword v27, v9, s[20:21] offset:128 sc1
s_branch L1poll
L1go:
s_lshl_b32 s33, s24, 8
v_lshl_add_u32 v8, v0, 2, s33
v_add_u32 v10, 4096, v8
s_waitcnt lgkmcnt(0)
s_barrier""")
    for n in range(7):
        A(f"ds_read2st64_b32 {q(32+4*n,2)}, v10 offset0:{4*n} offset1:{4*n+32}\nds_read2st64_b32 {q(34+4*n,2)}, v10 offset0:{4*n+64} offset1:{4*n+96}")
    for n in range(7):
        b=32+4*n
        A(f"s_waitcnt lgkmcnt({12-2*n})\nv_pk_add_f32 {q(b,2)}, {q(b,2)}, {q(b+2,2)}\nv_add_f32 v{b}, v{b}, v{b+1}\nbuffer_atomic_add_f32 v{b}, v{8 if n<4 else 10}, s[44:47], 0 offen offset:{(n%4)*1024}")
    A("s_branch L1fin")
    A("L1q:\nv_and_b32 v8, 3, v0\nv_lshrrev_b32 v10, 2, v2\nv_lshl_add_u32 v10, v10, 4, v2\nv_lshlrev_b32 v10, 2, v10")
    for r in (1,2,3):
        A(f"v_cmp_eq_u32 vcc, {r}, v8")
        for rt in range(2): A(f"v_cndmask_b32 v{GR+4*rt}, v{GR+4*rt}, v{GR+4*rt+r}, vcc")
    for rt in range(2): A(f"ds_bpermute_b32 v{GR+4*rt}, v10, v{GR+4*rt}")
    A("s_waitcnt lgkmcnt(0)\ns_barrier\nv_lshlrev_b32 v8, 4, v1")
    for t in range(10): A(f"ds_read_b128 {q(32+4*t)}, v8 offset:{64*t}")
    for rt in range(2): stats(RS+4*rt,GR+4*rt,CS+4*rt)
    A(f"""s_lshl_b32 s33, s27, 3
s_lshl_b32 s34, s24, 1
s_add_u32 s33, s33, s34
s_mul_i32 s33, s33, 20
s_mul_i32 s34, s31, 5
s_add_u32 s33, s33, s34
s_lshl_b32 s33, s33, 10
v_lshlrev_b32 v8, 4, v0
s_waitcnt lgkmcnt(0)""")
    for rt in range(2):
        for t in range(10):
            d=80+4*((t//2)%2)+8*rt
            for p in range(2):
                a=ACC+40*rt+4*t+2*p
                A(f"v_pk_fma_f32 {q(a,2)}, {q(RS+4*rt,2)}, {q(32+4*t+2*p,2)}, {q(a,2)} op_sel_hi:[0,1,1]")
                phi(a,10+2*p,q(GR+4*rt,2),q(CS+4*rt,2),("op_sel_hi:[1,0]","op_sel_hi:[1,0,1]"))
                A(f"v_cvt_pk_bf16_f32 v{d+2*(t&1)+p}, v{a}, v{a+1}")
            if t&1: A(f"s_add_u32 s34, s33, {PQ+rt*20480+(t//2)*1024}\nbuffer_store_dwordx4 {q(d)}, v8, s[40:43], s34 offen")
    A("s_branch L1fin")
    A(f"""L1help:
s_sub_u32 s26, s26, 24
s_lshl_b32 s26, s26, 3
s_add_u32 s26, s26, s25
s_lshl_b32 s27, s24, 6
s_add_u32 s27, s27, s26
s_cmp_ge_u32 s27, 410
s_cbranch_scc1 L1end
s_mul_i32 s28, s27, 547
s_lshr_b32 s28, s28, 16
s_mul_i32 s29, s28, 120
s_sub_u32 s29, s27, s29
s_mov_b32 s31, 13108
s_mov_b32 s46, 1966080
s_mov_b32 s34, 1280
s_cmp_eq_u32 s28, 2
s_cselect_b32 s30, 12, 5
s_cselect_b32 s31, 5462, s31
s_cselect_b32 s32, 48, 20
s_mul_i32 s31, s29, s31
s_lshr_b32 s31, s31, 16
s_mul_i32 s30, s31, s30
s_sub_u32 s30, s29, s30
s_waitcnt lgkmcnt(0)
s_mov_b32 s44, s12
s_mov_b32 s45, s13
s_mov_b32 s33, {FG}
s_cmp_eq_u32 s28, 1
s_cselect_b32 s44, s14, s44
s_cselect_b32 s45, s15, s45
s_cselect_b32 s33, {FU}, s33
s_cmp_eq_u32 s28, 2
s_cselect_b32 s44, s16, s44
s_cselect_b32 s45, s17, s45
s_cselect_b32 s33, {FD}, s33
s_cmp_eq_u32 s28, 3
s_cselect_b32 s44, s8, s44
s_cselect_b32 s45, s9, s45
s_cselect_b32 s33, {FWO}, s33
s_cselect_b32 s46, 819200, s46
s_mov_b32 s47, 0x20000
s_cmp_lt_u32 s28, 2
s_cselect_b32 s34, 3072, s34
v_lshrrev_b32 v3, 3, v0
v_mul_lo_u32 v3, v3, s34
v_and_b32 v4, 7, v0
v_lshl_add_u32 v3, v4, 4, v3
s_mul_i32 s35, s30, s34
s_add_u32 s35, s35, s31
s_lshl_b32 s35, s35, 7
s_lshl_b32 s36, s34, 3
s_lshl_b32 s37, s24, 14
s_mov_b32 m0, s37
s_mov_b32 s38, 0
L1hl:
buffer_load_dwordx4 v3, s[44:47], s35 offen lds
s_add_u32 m0, m0, 1024
s_add_u32 s35, s35, s36
s_add_u32 s38, s38, 1
s_cmp_lt_u32 s38, 16
s_cbranch_scc1 L1hl""")
    srd(A,40,22,0x2000000)
    A(f"""v_lshrrev_b32 v3, 2, v0
v_lshlrev_b32 v3, 7, v3
v_and_b32 v4, 3, v0
v_lshl_add_u32 v3, v4, 3, v3
v_add_u32 v3, s37, v3
v_lshlrev_b32 v4, 4, v0
s_mul_i32 s35, s31, s32
s_add_u32 s35, s35, s30
s_lshl_b32 s35, s35, 12
s_add_u32 s35, s35, s33
s_lshl_b32 s36, s32, 10
v_lshlrev_b32 v5, 4, v1
v_cmp_eq_u32 vcc, 0, v2
v_mov_b32 v6, {OOB}
v_cndmask_b32 v5, v6, v5, vcc
s_mul_i32 s38, s30, 12288
s_mul_i32 s39, s28, 6144
s_add_u32 s38, s38, s39
s_lshl_b32 s39, s31, 8
s_add_u32 s38, s38, s39
s_add_u32 s38, s38, {CSP}""")
    for r in range(4): A(f"v_mov_b32 v{ONE+r}, 0x3f803f80")
    A("s_waitcnt vmcnt(0)")
    for t in range(4):
        for s in range(4):
            for h in range(2): A(f"ds_read_b64_tr_b16 {q(32+16*t+4*s+2*h,2)}, v3 offset:{4096*s+2048*h+32*t}")
        if t:
            A("s_waitcnt lgkmcnt(8)")
            for s in range(4): A(f"buffer_store_dwordx4 {q(32+16*(t-1)+4*s)}, v4, s[40:43], s35 offen offset:{1024*s}")
            A("s_add_u32 s35, s35, s36")
    A("s_waitcnt lgkmcnt(0)")
    for s in range(4): A(f"buffer_store_dwordx4 {q(32+48+4*s)}, v4, s[40:43], s35 offen offset:{1024*s}")
    A("s_cmp_ge_u32 s28, 2\ns_cbranch_scc1 L1fin")
    for s in range(4):
        for t in range(4): A(mf(q(8+4*t),q(32+16*t+4*s),q(ONE),None if s else "0"))
    for t in range(4): A(f"buffer_store_dwordx4 {q(8+4*t)}, v5, s[40:43], s38 offen offset:{64*t}")
    A("L1fin:"); stamp_out(A,0,"L1end")
    A("L1end:\ns_endpgm")
    return A
if __name__=="__main__":
    from gen2 import k2,k3,k4
    print(emit([k1(),k2(),k3(),k4()]),end="")
```

```python
import sys
from asmlib import *
STAMP = 'stamp' in sys.argv
PQ,KVS,CSP,HST,HF,HH,FWO,FG,FU,FD = 0,0x300000,0x320000,0x340000,0x400000,0x800000,0x1000000,0x1100000,0x1300000,0x1500000
OOB=0x40000000
MF="v_mfma_f32_16x16x32_bf16"
def mf(d,a,b,c=None):
    return f"{MF} {d}, {a}, {b}, {d if c is None else c}"
def stamp(A,i):
    if STAMP: A(f"s_memrealtime s[{90+2*i}:{91+2*i}]")
def stamp_out(A,k,lab):
    if not STAMP: return
    A(f"""s_waitcnt vmcnt(0)
s_memrealtime s[96:97]
s_cmp_lg_u32 s24, 0
s_cbranch_scc1 {lab}
s_waitcnt lgkmcnt(0)
s_add_u32 s22, s22, {0x8000000+k*32768}
s_addc_u32 s23, s23, 0
s_lshl_b32 s26, s2, 5""")
    for i in range(8): A(f"v_mov_b32 v{4+i}, s{90+i}")
    A("v_mov_b32 v1, s26\nglobal_store_dwordx4 v1, v[4:7], s[22:23]\nglobal_store_dwordx4 v1, v[8:11], s[22:23] offset:16")
def entry(A,end):
    A(f"s_cmp_ge_u32 s2, 256\ns_cbranch_scc1 {end}")
    stamp(A,0)
    A("""s_load_dwordx16 s[4:19], s[0:1], 0
s_load_dwordx4 s[20:23], s[0:1], 64
v_lshrrev_b32 v1, 6, v0
v_and_b32 v0, 63, v0
v_readfirstlane_b32 s24, v1
v_lshrrev_b32 v1, 4, v0
v_and_b32 v2, 15, v0
s_and_b32 s25, s2, 7
s_lshr_b32 s26, s2, 3""")
def srd(A,b,p,n,off=None):
    if off is None: A(f"s_mov_b32 s{b}, s{p}\ns_mov_b32 s{b+1}, s{p+1}")
    else: A(f"s_add_u32 s{b}, s{p}, {off}\ns_addc_u32 s{b+1}, s{p+1}, 0")
    A(f"s_mov_b32 s{b+2}, {n}\ns_mov_b32 s{b+3}, 0x20000")
def gsum(A,r,t):
    for p in ("32","16"):
        A(f"v_mov_b32 v{t}, v{r}\nv_permlane{p}_swap_b32 v{r}, v{t}\nv_add_f32 v{r}, v{r}, v{t}")
PAIRS=[(a,b) for a in range(5) for b in range(5) if {x//5 for x in range(4*a,4*a+4)}&{x//5 for x in range(4*b,4*b+4)}]

def k1():
    A=K("k1_kernel",256,512,147456); SL=36864
    entry(A,"L1end")
    A("""s_cmp_ge_u32 s26, 24
s_cbranch_scc1 L1help
s_mul_i32 s27, s26, 43
s_lshr_b32 s27, s27, 8
s_mul_i32 s28, s27, 6
s_sub_u32 s28, s26, s28
s_lshr_b32 s29, s25, 1
s_lshl_b32 s29, s29, 2
s_add_u32 s27, s27, s29
s_and_b32 s29, s25, 1
s_lshl_b32 s30, s29, 2
s_add_u32 s30, s30, s28
s_lshl_b32 s31, s29, 1
s_add_u32 s31, s31, s28
s_sub_u32 s31, s31, 4
s_cmp_lt_u32 s24, 4
s_cbranch_scc1 L1comp""")
    A("""s_sub_u32 s32, s24, 4
s_and_b32 s33, s32, 1
s_lshl_b32 s33, s33, 2
v_add_u32 v3, s33, v1
v_and_b32 v4, 7, v0
v_xor_b32 v3, v3, v4
v_lshrrev_b32 v4, 3, v0
v_mul_u32_u24 v4, 1280, v4
v_lshl_add_u32 v10, v3, 4, v4
s_mul_i32 s34, s30, 160
s_add_u32 s34, s34, 1280
s_mul_i32 s35, s31, 320
s_cmp_lt_u32 s28, 4
s_cselect_b32 s34, s34, s35
s_cselect_b32 s35, 1120, 0
s_mul_i32 s36, s32, 61440
s_add_u32 s34, s34, s36
s_lshl_b32 s36, s27, 7
s_lshl_b32 s37, s32, 3
s_add_u32 s36, s36, s37
s_mul_i32 s36, s36, 1280
v_mov_b32 v9, s35""")
    for m in range(5):
        A(f"""v_add_u32 v3, {64*m}, v0
v_mul_u32_u24 v4, 3277, v3
v_lshrrev_b32 v4, 16, v4
v_mul_u32_u24 v5, 20, v4
v_sub_u32 v5, v3, v5
v_lshrrev_b32 v6, 2, v4
v_and_b32 v6, 2, v6
v_xor_b32 v5, v5, v6
v_cmp_le_u32 vcc, 10, v5
v_mul_u32_u24 v4, 3840, v4
v_lshl_add_u32 v4, v5, 4, v4
v_cndmask_b32 v6, 0, v9, vcc
v_add_u32 v{11+m}, v4, v6""")
    A("""s_lshl_b32 s38, s32, 10
s_mul_i32 s39, s32, 5120
s_add_u32 s39, s39, 16384
s_mov_b32 s37, 0
s_waitcnt lgkmcnt(0)""")
    srd(A,40,4,2621440); srd(A,44,6,2457600)
    A("""L1ld:
s_cmp_lt_u32 s37, 4
s_cbranch_scc1 L1is
s_cmp_lg_u32 s37, 4
s_cbranch_scc1 L1w
s_waitcnt vmcnt(27)
s_barrier
L1w:
s_waitcnt vmcnt(18)
s_barrier
L1is:""")
    for m in range(5):
        A(f"s_add_u32 m0, s39, {m*1024}\ns_add_u32 s48, s36, {m*40960}\nbuffer_load_dwordx4 v{11+m}, s[44:47], s34 offen lds")
        if m<4: A(f"s_add_u32 m0, s38, {m*4096}\ns_nop 0\nbuffer_load_dwordx4 v10, s[40:43], s48 offen lds")
    A(f"""s_add_u32 s36, s36, 128
s_add_u32 s34, s34, 245760
s_add_u32 s37, s37, 1
s_mov_b32 s49, {SL}
s_and_b32 s48, s37, 3
s_cselect_b32 s48, s49, {-3*SL}
s_add_u32 s38, s38, s48
s_add_u32 s39, s39, s48
s_cmp_lt_u32 s37, 10
s_cbranch_scc1 L1ld
s_waitcnt vmcnt(18)
s_barrier
s_waitcnt vmcnt(9)
s_barrier
s_waitcnt vmcnt(0)
s_barrier
s_barrier
s_endpgm""")
    XA0,XA1,WE,WO,ONE,ACC,RS,GR,CS,AD=4,5,6,7,28,128,208,216,224,236
    F=[32,80]
    A(f"""L1comp:
s_lshl_b32 s32, s24, 12
v_lshrrev_b32 v3, 1, v2
v_xor_b32 v3, v3, v1
v_lshlrev_b32 v3, 4, v3
v_lshl_add_u32 v3, v2, 7, v3
v_add_u32 v{XA0}, s32, v3
v_xor_b32 v{XA1}, 64, v{XA0}
v_lshrrev_b32 v3, 2, v2
v_lshl_add_u32 v3, v1, 3, v3
v_mul_u32_u24 v3, 320, v3
v_and_b32 v8, 3, v0
v_lshl_add_u32 v3, v8, 3, v3
v_add_u32 v3, 16384, v3
v_and_b32 v8, 1, v1
v_lshlrev_b32 v8, 5, v8
v_add_u32 v{WE}, v3, v8
v_sub_u32 v{WO}, v3, v8
s_waitcnt lgkmcnt(0)""")
    srd(A,40,22,0x2000000)
    A("s_mul_i32 s33, s30, 6720\ns_add_u32 s33, s33, %d"%KVS); srd(A,44,22,6720,"s33")
    A(f"""s_lshl_b32 s34, s30, 2
v_mov_b32 v9, s34
s_cmp_ge_u32 s28, 4
s_cbranch_scc1 L1nz
s_cmp_lg_u32 s24, 0
s_cbranch_scc1 L1nz
v_mov_b32 v10, 1
s_mov_b64 exec, 1
global_atomic_add v11, v9, v10, s[20:21] sc0
s_waitcnt vmcnt(0)
v_readfirstlane_b32 s35, v11
s_mov_b64 exec, -1
s_cmp_lg_u32 s35, 0
s_cbranch_scc1 L1nz
v_lshlrev_b32 v11, 4, v0
v_mov_b32 v12, 0
v_mov_b32 v13, 0
v_mov_b32 v14, 0
v_mov_b32 v15, 0
v_add_u32 v16, 4096, v11""")
    for n in range(7): A(f"buffer_store_dwordx4 v[12:15], v{11 if n<4 else 16}, s[44:47], 0 offen offset:{(n%4)*1024} sc1")
    A("""s_waitcnt vmcnt(0)
s_mov_b64 exec, 1
global_store_dword v9, v10, s[20:21] offset:128 sc1
s_mov_b64 exec, -1
L1nz:""")
    for r in range(4): A(f"v_mov_b32 v{ONE+r}, 0x3f803f80")
    for r in range(ACC,AD): A(f"v_mov_b32 v{r}, 0")
    A("s_lshl_b32 s33, s24, 13\ns_add_u32 s33, s33, 4096\nv_lshl_add_u32 v10, v0, 4, s33\nv_add_u32 v10, 6784, v10")
    for dt in range(5):
        A(f"""v_add_u32 v11, {4*dt}, v1
v_mul_u32_u24 v12, 52, v11
v_lshrrev_b32 v12, 8, v12
v_mul_u32_u24 v12, 20, v12
v_sub_u32 v12, v2, v12
v_mul_u32_u24 v11, 336, v11
v_add_u32 v11, s33, v11
v_cmp_eq_u32 vcc, 0, v2
v_add_u32 v13, 320, v11
v_cndmask_b32 v{AD+13+dt}, v10, v13, vcc""")
        for n,(a,b) in enumerate(PAIRS):
            if a==dt: A(f"v_add_u32 v13, {16*b}, v12\nv_cmp_gt_u32 vcc, 20, v13\nv_lshl_add_u32 v13, v13, 4, v11\nv_cndmask_b32 v{AD+n}, v10, v13, vcc")
    def reads(k,s):
        L=[f"ds_read_b128 {q(F[k]+4*rt)}, v{XA1 if s else XA0} offset:{2048*rt}" for rt in range(2)]
        for t in range(10):
            for h in range(2): L.append(f"ds_read_b64_tr_b16 {q(F[k]+8+4*t+2*h,2)}, v{WO if t&1 else WE} offset:{32*t+10240*s+1280*h}")
        return L
    def mms(k,isq,w):
        L=[]; x=lambda rt:q(F[k]+4*rt); W=lambda t:q(F[k]+8+4*t)
        for rt in range(2):
            L.append(mf(q(GR+4*rt),x(rt),x(rt)))
            L.append(mf(q(RS+4*rt),q(ONE),x(rt)) if isq else mf(q(RS+4*rt),x(rt),q(ONE)))
        for t in range(10):
            for rt in range(2): L.append(mf(q(ACC+40*rt+4*t),W(t),x(rt)) if isq else mf(q(ACC+40*rt+4*t),x(rt),W(t)))
            if t%4==w: L.append(mf(q(CS+4*(t//4)),W(t),q(ONE)))
        return L
    A(f"s_mov_b32 s37, 0\ns_mov_b32 s49, {SL}\ns_barrier"); stamp(A,1)
    for l in reads(0,0): A(l)
    A("s_cmp_ge_u32 s28, 4\ns_cselect_b32 s34, 4, 0\ns_add_u32 s34, s34, s24")
    for v in range(7): A(f"s_cmp_eq_u32 s34, {v}\ns_cbranch_scc1 L1m{v}")
    for v in (7,6,5,4,3,2,1,0):
        isq,w=v>=4,v&3
        A(f".p2align 6\nL1m{v}:\ns_waitcnt lgkmcnt(0)")
        for l in weave(mms(0,isq,w),reads(1,1)): A(l)
        A(f"s_add_u32 s37, s37, 1\ns_and_b32 s48, s37, 3\ns_cselect_b32 s48, s49, {-3*SL}")
        for r in (XA0,XA1,WE,WO): A(f"v_add_u32 v{r}, s48, v{r}")
        A("s_waitcnt lgkmcnt(0)\ns_barrier")
        for l in weave(mms(1,isq,w),reads(0,0)): A(l)
        A(f"s_cmp_lt_u32 s37, 10\ns_cbranch_scc1 L1m{v}")
        if v: A("s_branch L1epi")
    A("L1epi:\ns_nop 7"); stamp(A,2)
    A("s_lshl_b32 s33, s24, 6\nv_lshl_add_u32 v8, v1, 4, s33\ns_waitcnt lgkmcnt(0)")
    for n in range(3): A(f"ds_write_b128 v8, {q(CS+4*n)} offset:{256*n}")
    A("s_mov_b32 s50, 0x3acccccd\ns_mov_b32 s51, 0x3fb8aa3b\ns_mov_b32 s52, 0x358637bd\ns_mov_b32 s53, 0x358637bd\ns_cmp_ge_u32 s28, 4\ns_cbranch_scc1 L1q")
    def stats(rs,sq,rl):
        A(f"""v_mul_f32 v{rs}, s50, v{rs}
v_mul_f32 v{sq}, s50, v{sq}
v_fma_f32 v{sq}, -v{rs}, v{rs}, v{sq}
v_max_f32 v{sq}, 0, v{sq}
v_add_f32 v{sq}, 0x3727c5ac, v{sq}
v_rsq_f32 v{sq}, v{sq}
v_xor_b32 v{rs}, 0x80000000, v{rs}
v_mul_f32 v{rl}, s51, v{sq}""")
    def phi(a,t,rstd,rl,sel):
        A(f"""v_pk_mul_f32 {q(t,2)}, {q(a,2)}, {rl} {sel[0]}
v_pk_fma_f32 {q(a,2)}, {q(a,2)}, {rstd}, s[52:53] {sel[1]}
v_exp_f32_e64 v{t}, v{t} clamp
v_exp_f32_e64 v{t+1}, v{t+1} clamp
v_max_f32 v{a}, s52, v{a}
v_max_f32 v{a+1}, s52, v{a+1}
v_pk_add_f32 {q(a,2)}, {q(a,2)}, {q(t,2)}""")
    A("global_load_dword v27, v9, s[20:21] offset:128 sc1\nv_mul_u32_u24 v8, 80, v1")
    for rt in range(2):
        for r in range(4): A(f"ds_bpermute_b32 v{GR+4*rt+r}, v8, v{GR+4*rt+r} offset:{4*r}")
    A("s_waitcnt lgkmcnt(0)\ns_barrier\nv_lshlrev_b32 v8, 2, v2")
    for t in range(10): A(f"ds_read_b32 v{32+t}, v8 offset:{64*t}")
    for r in range(8): stats(RS+r,GR+r,CS+r)
    A("s_waitcnt lgkmcnt(0)")
    FR=48
    for t in range(10):
        cs=q(32+(t&~1),2); o=t&1
        for rt in range(2):
            for p in range(2):
                a=ACC+40*rt+4*t+2*p; rr=4*rt+2*p
                A(f"v_pk_fma_f32 {q(a,2)}, {q(RS+rr,2)}, {cs}, {q(a,2)} op_sel:[0,{o},0] op_sel_hi:[1,{o},1]")
                if t<5: phi(a,10+2*p,q(GR+rr,2),q(CS+rr,2),("",""))
                else: A(f"v_pk_mul_f32 {q(a,2)}, {q(a,2)}, {q(GR+rr,2)}")
                A(f"v_cvt_pk_bf16_f32 v{FR+4*t+2*rt+p}, v{a}, v{a+1}")
    for n,(a,b) in enumerate(PAIRS): A(mf(q(ACC+4*n),q(FR+4*a),q(FR+20+4*b),"0"))
    for a in range(5): A(mf(q(ACC+52+4*a),q(FR+4*a),q(ONE),"0"))
    for n in range(18): A(f"ds_write_b128 v{AD+n}, {q(ACC+4*n)}")
    A("""L1poll:
s_waitcnt vmcnt(0)
v_readfirstlane_b32 s35, v27
s_cmp_lg_u32 s35, 0
s_cbranch_scc1 L1go
global_load_dword v27, v9, s[20:21] offset:128 sc1
s_branch L1poll
L1go:
s_lshl_b32 s33, s24, 8
v_lshl_add_u32 v8, v0, 2, s33
v_add_u32 v10, 4096, v8
s_waitcnt lgkmcnt(0)
s_barrier""")
    for n in range(7):
        A(f"ds_read2st64_b32 {q(32+4*n,2)}, v10 offset0:{4*n} offset1:{4*n+32}\nds_read2st64_b32 {q(34+4*n,2)}, v10 offset0:{4*n+64} offset1:{4*n+96}")
    for n in range(7):
        b=32+4*n
        A(f"s_waitcnt lgkmcnt({12-2*n})\nv_pk_add_f32 {q(b,2)}, {q(b,2)}, {q(b+2,2)}\nv_add_f32 v{b}, v{b}, v{b+1}\nbuffer_atomic_add_f32 v{b}, v{8 if n<4 else 10}, s[44:47], 0 offen offset:{(n%4)*1024}")
    A("s_branch L1fin")
    A("L1q:\nv_and_b32 v8, 3, v0\nv_lshrrev_b32 v10, 2, v2\nv_lshl_add_u32 v10, v10, 4, v2\nv_lshlrev_b32 v10, 2, v10")
    for r in (1,2,3):
        A(f"v_cmp_eq_u32 vcc, {r}, v8")
        for rt in range(2): A(f"v_cndmask_b32 v{GR+4*rt}, v{GR+4*rt}, v{GR+4*rt+r}, vcc")
    for rt in range(2): A(f"ds_bpermute_b32 v{GR+4*rt}, v10, v{GR+4*rt}")
    A("s_waitcnt lgkmcnt(0)\ns_barrier\nv_lshlrev_b32 v8, 4, v1")
    for t in range(10): A(f"ds_read_b128 {q(32+4*t)}, v8 offset:{64*t}")
    for rt in range(2): stats(RS+4*rt,GR+4*rt,CS+4*rt)
    A(f"""s_lshl_b32 s33, s27, 3
s_lshl_b32 s34, s24, 1
s_add_u32 s33, s33, s34
s_mul_i32 s33, s33, 20
s_mul_i32 s34, s31, 5
s_add_u32 s33, s33, s34
s_lshl_b32 s33, s33, 10
v_lshlrev_b32 v8, 4, v0
s_waitcnt lgkmcnt(0)""")
    for rt in range(2):
        for t in range(10):
            d=80+4*((t//2)%2)+8*rt
            for p in range(2):
                a=ACC+40*rt+4*t+2*p
                A(f"v_pk_fma_f32 {q(a,2)}, {q(RS+4*rt,2)}, {q(32+4*t+2*p,2)}, {q(a,2)} op_sel_hi:[0,1,1]")
                phi(a,10+2*p,q(GR+4*rt,2),q(CS+4*rt,2),("op_sel_hi:[1,0]","op_sel_hi:[1,0,1]"))
                A(f"v_cvt_pk_bf16_f32 v{d+2*(t&1)+p}, v{a}, v{a+1}")
            if t&1: A(f"s_add_u32 s34, s33, {PQ+rt*20480+(t//2)*1024}\nbuffer_store_dwordx4 {q(d)}, v8, s[40:43], s34 offen")
    A("s_branch L1fin")
    A(f"""L1help:
s_sub_u32 s26, s26, 24
s_lshl_b32 s26, s26, 3
s_add_u32 s26, s26, s25
s_lshl_b32 s27, s24, 6
s_add_u32 s27, s27, s26
s_cmp_ge_u32 s27, 410
s_cbranch_scc1 L1end
s_mul_i32 s28, s27, 547
s_lshr_b32 s28, s28, 16
s_mul_i32 s29, s28, 120
s_sub_u32 s29, s27, s29
s_mov_b32 s31, 13108
s_mov_b32 s46, 1966080
s_mov_b32 s34, 1280
s_cmp_eq_u32 s28, 2
s_cselect_b32 s30, 12, 5
s_cselect_b32 s31, 5462, s31
s_cselect_b32 s32, 48, 20
s_mul_i32 s31, s29, s31
s_lshr_b32 s31, s31, 16
s_mul_i32 s30, s31, s30
s_sub_u32 s30, s29, s30
s_waitcnt lgkmcnt(0)
s_mov_b32 s44, s12
s_mov_b32 s45, s13
s_mov_b32 s33, {FG}
s_cmp_eq_u32 s28, 1
s_cselect_b32 s44, s14, s44
s_cselect_b32 s45, s15, s45
s_cselect_b32 s33, {FU}, s33
s_cmp_eq_u32 s28, 2
s_cselect_b32 s44, s16, s44
s_cselect_b32 s45, s17, s45
s_cselect_b32 s33, {FD}, s33
s_cmp_eq_u32 s28, 3
s_cselect_b32 s44, s8, s44
s_cselect_b32 s45, s9, s45
s_cselect_b32 s33, {FWO}, s33
s_cselect_b32 s46, 819200, s46
s_mov_b32 s47, 0x20000
s_cmp_lt_u32 s28, 2
s_cselect_b32 s34, 3072, s34
v_lshrrev_b32 v3, 3, v0
v_mul_lo_u32 v3, v3, s34
v_and_b32 v4, 7, v0
v_lshl_add_u32 v3, v4, 4, v3
s_mul_i32 s35, s30, s34
s_add_u32 s35, s35, s31
s_lshl_b32 s35, s35, 7
s_lshl_b32 s36, s34, 3
s_lshl_b32 s37, s24, 14
s_mov_b32 m0, s37
s_mov_b32 s38, 0
L1hl:
buffer_load_dwordx4 v3, s[44:47], s35 offen lds
s_add_u32 m0, m0, 1024
s_add_u32 s35, s35, s36
s_add_u32 s38, s38, 1
s_cmp_lt_u32 s38, 16
s_cbranch_scc1 L1hl""")
    srd(A,40,22,0x2000000)
    A(f"""v_lshrrev_b32 v3, 2, v0
v_lshlrev_b32 v3, 7, v3
v_and_b32 v4, 3, v0
v_lshl_add_u32 v3, v4, 3, v3
v_add_u32 v3, s37, v3
v_lshlrev_b32 v4, 4, v0
s_mul_i32 s35, s31, s32
s_add_u32 s35, s35, s30
s_lshl_b32 s35, s35, 12
s_add_u32 s35, s35, s33
s_lshl_b32 s36, s32, 10
v_lshlrev_b32 v5, 4, v1
v_cmp_eq_u32 vcc, 0, v2
v_mov_b32 v6, {OOB}
v_cndmask_b32 v5, v6, v5, vcc
s_mul_i32 s38, s30, 12288
s_mul_i32 s39, s28, 6144
s_add_u32 s38, s38, s39
s_lshl_b32 s39, s31, 8
s_add_u32 s38, s38, s39
s_add_u32 s38, s38, {CSP}""")
    for r in range(4): A(f"v_mov_b32 v{ONE+r}, 0x3f803f80")
    A("s_waitcnt vmcnt(0)")
    for t in range(4):
        for s in range(4):
            for h in range(2): A(f"ds_read_b64_tr_b16 {q(32+16*t+4*s+2*h,2)}, v3 offset:{4096*s+2048*h+32*t}")
        if t:
            A("s_waitcnt lgkmcnt(8)")
            for s in range(4): A(f"buffer_store_dwordx4 {q(32+16*(t-1)+4*s)}, v4, s[40:43], s35 offen offset:{1024*s}")
            A("s_add_u32 s35, s35, s36")
    A("s_waitcnt lgkmcnt(0)")
    for s in range(4): A(f"buffer_store_dwordx4 {q(32+48+4*s)}, v4, s[40:43], s35 offen offset:{1024*s}")
    A("s_cmp_ge_u32 s28, 2\ns_cbranch_scc1 L1fin")
    for s in range(4):
        for t in range(4): A(mf(q(8+4*t),q(32+16*t+4*s),q(ONE),None if s else "0"))
    for t in range(4): A(f"buffer_store_dwordx4 {q(8+4*t)}, v5, s[40:43], s38 offen offset:{64*t}")
    A("L1fin:"); stamp_out(A,0,"L1end")
    A("L1end:\ns_endpgm")
    return A
if __name__=="__main__":
    from gen2 import k2,k3,k4
    ks=[k1(),k2(),k3(),k4()]
    if 'empty' in sys.argv:
        for i in range(4):
            e=K(f"e{i}_kernel",256,256,0,64,64); e("s_endpgm"); ks.append(e)
    for a in sys.argv:
        if a.startswith('spin'):
            kk,jj=int(a[4]),int(a[5])
            e=K("sp_kernel",1,64,0,64,64)
            e(f'''s_cmp_ge_u32 s2, 1
s_cbranch_scc1 Lse
s_load_dwordx2 s[22:23], s[0:1], 72
s_memrealtime s[8:9]
v_mov_b32 v1, {0x8000000+kk*32768+jj*8}
s_waitcnt lgkmcnt(0)
global_load_dword v2, v1, s[22:23]
s_waitcnt vmcnt(0)
v_readfirstlane_b32 s10, v2
Lsp:
s_memrealtime s[12:13]
s_waitcnt lgkmcnt(0)
s_sub_u32 s14, s12, s8
s_cmp_ge_u32 s14, 20000
s_cbranch_scc1 Lse
s_sub_u32 s14, s12, s10
s_cmp_lt_u32 s14, 10000
s_cbranch_scc1 Lsp
Lse:
s_endpgm''')
            ks.append(e)
    o=emit(ks)
    if 'cyc' in sys.argv: o=o.replace("s_memrealtime","s_memtime")
    print(o,end="")
```

```python
from gen import *
def map64(A):
    A("""s_lshr_b32 s27, s26, 2
s_lshr_b32 s28, s25, 1
s_lshl_b32 s28, s28, 3
s_add_u32 s27, s27, s28
s_and_b32 s28, s25, 1
s_lshl_b32 s28, s28, 2
s_and_b32 s29, s26, 3
s_add_u32 s28, s28, s29
s_lshl_b32 s29, s27, 2
s_add_u32 s29, s29, s24
v_lshlrev_b32 v3, 4, v0""")
def hoffs(A,b):
    A(f"s_mul_i32 s30, s29, 20480\ns_add_u32 s30, s30, {HF}\ns_mul_i32 s31, s28, 5")
    for t in range(5):
        A(f"s_add_u32 s32, s31, {t}\ns_and_b32 s33, s32, 1\ns_lshr_b32 s32, s32, 1\ns_lshl_b32 s32, s32, 7\ns_add_u32 s32, s32, s33\ns_lshl_b32 s32, s32, 3\ns_add_u32 s{b+t}, s32, s30")
def reduce_res(A,ACC,res,P):
    A("s_mul_i32 s30, s24, 20480\nv_add_u32 v4, s30, v3\ns_mul_i32 s30, s24, 5120\nv_add_u32 v5, s30, v3\nv_add_u32 v6, 40960, v5")
    for n in range(20): A(f"ds_write_b128 v4, {q(ACC+4*n)} offset:{1024*n}")
    A("s_waitcnt lgkmcnt(0)\ns_barrier"); stamp(A,'e')
    def rd(t):
        for w in range(4): A(f"ds_read_b128 {q(ACC+16*t+4*w)}, v{5+w//2} offset:{(w&1)*20480+1024*t}")
    for t in range(3): rd(t)
    A("s_waitcnt vmcnt(0)")
    for t in range(5):
        b=ACC+16*t
        A(f"s_waitcnt lgkmcnt({min(8,4*(4-t))})")
        if t<2: rd(t+3)
        for p in range(2):
            A(res(2*t+p))
            A(f"""v_pk_add_f32 {q(b+2*p,2)}, {q(b+2*p,2)}, {q(b+4+2*p,2)}
v_pk_add_f32 {q(b+8+2*p,2)}, {q(b+8+2*p,2)}, {q(b+12+2*p,2)}
v_lshlrev_b32 v14, 16, v15
v_and_b32 v15, 0xffff0000, v15
v_pk_add_f32 {q(b+2*p,2)}, {q(b+2*p,2)}, {q(b+8+2*p,2)}
v_pk_add_f32 {q(b+2*p,2)}, {q(b+2*p,2)}, v[14:15]
v_cvt_pk_bf16_f32 v{P+2*t+p}, v{b+2*p}, v{b+2*p+1}""")
def k2():
    A=K("k2_kernel",256,256,81920,512,256)
    entry(A,"L2end"); map64(A)
    A(f"""s_mul_i32 s34, s24, 20480
s_mul_i32 s35, s24, 13440
s_add_u32 s35, s35, {KVS}
s_mul_i32 s36, s27, 81920
s_mul_i32 s37, s24, 5120
s_add_u32 s36, s36, s37
s_mul_i32 s38, s28, 102400
s_add_u32 s37, s37, s38
s_waitcnt lgkmcnt(0)""")
    srd(A,40,22,0x2000000); srd(A,44,4,2621440)
    for n in range(14):
        if n%4==0: A(f"s_add_u32 m0, s34, {n*1024}\ns_add_u32 s38, s35, {n*1024}")
        A(f"buffer_load_dwordx4 v3, s[40:43], s38 offen offset:{(n%4)*1024} lds")
    stamp(A,'f')
    if 'w1' in sys.argv: A("s_waitcnt vmcnt(0)"); stamp(A,'h')
    for m in range(4):
        for s in range(5):
            if s%4==0: A(f"s_add_u32 s38, s36, {PQ+m*20480+s*1024}")
            A(f"buffer_load_dwordx4 {q(20*m+4*s,4,'a')}, v3, s[40:43], s38 offen offset:{(s%4)*1024}")
    stamp(A,'g')
    if 'w1' in sys.argv: A("s_waitcnt vmcnt(0)"); stamp(A,'i')
    for s in range(5):
        for t in range(5): A(f"s_add_u32 s38, s37, {FWO+t*20480+s*1024}\nbuffer_load_dwordx4 {q(80+20*s+4*t,4,'a')}, v3, s[40:43], s38 offen")
    stamp(A,'a')
    hd=lambda a:{x//5 for x in range(4*a,4*a+4)}
    G=[(0,3,(0,1)),(3,4,(1,2,3)),(7,3,(3,4))]
    frags=[('z',gi,T) for gi,g in enumerate(G) for T in g[2]]
    for t in range(10): frags+=[('t',t,T) for T in range(5) if hd(t)&(hd(2*T)|hd(2*T+1))]
    assert len(frags)==25
    FR,ST,D,DEN,RC,OF=16,92,116,156,4,176
    halves=[];n=0
    for f,(k,p,T) in enumerate(frags):
        for h in range(2):
            qn=2*T+h
            live = (hd(qn)&set().union(*[hd(G[p][0]+r) for r in range(G[p][1])])) if k=='z' else hd(qn)&hd(p)
            halves.append((FR+4*f+2*h,k,p,qn,n if live else None)); n+=bool(live)
    NR=n; assert NR<=40
    A("s_add_u32 s39, s34, 14336\nv_mov_b32 v4, s39\nv_mov_b32 v8, 0\nv_mov_b32 v9, 0\nv_mov_b32 v10, 0\nv_mov_b32 v11, 0\nds_write_b128 v4, v[8:11]")
    A("v_and_b32 v8, 3, v2\nv_lshrrev_b32 v9, 2, v2\nv_lshl_add_u32 v8, v8, 2, v9")
    for gi,g in enumerate(G): A(f"v_add_u32 v9, {4*g[0]}, v8\nv_mul_u32_u24 v9, 52, v9\nv_lshrrev_b32 v{5+gi}, 8, v9")
    for qn in range(10):
        A(f"""v_add_u32 v8, {4*qn}, v1
v_mul_u32_u24 v9, 52, v8
v_lshrrev_b32 v9, 8, v9
v_mul_u32_u24 v10, 20, v9
v_sub_u32 v10, v2, v10
v_mul_u32_u24 v8, 336, v8
v_add_u32 v8, s34, v8
v_add_u32 v11, 320, v8""")
        for d,k,p,q_,n in halves:
            if q_!=qn or n is None: continue
            if k=='z': A(f"v_cmp_eq_u32 vcc, v9, v{5+p}\nv_cndmask_b32 v{ST+4*n}, v4, v11, vcc")
            else: A(f"v_add_u32 v12, {16*p}, v10\nv_cmp_gt_u32 vcc, 20, v12\nv_lshl_add_u32 v12, v12, 4, v8\nv_cndmask_b32 v{ST+4*n}, v4, v12, vcc")
    hoffs(A,50); stamp(A,'b')
    A(f"""v_mul_u32_u24 v14, 1280, v2
v_lshl_add_u32 v14, v1, 3, v14
s_mul_i32 s30, s29, 20480
s_mul_i32 s31, s28, 160
s_add_u32 s30, s30, s31
s_waitcnt vmcnt(45) lgkmcnt(0)"""); stamp(A,1)
    for t in range(5): A(f"buffer_load_dwordx2 {q(180+2*t,2,'a')}, v14, s[44:47], s30 offen offset:{32*t}")
    W=12
    for n in range(W): A(f"ds_read_b128 {q(ST+4*n)}, v{ST+4*n}")
    for d,k,p,qn,n in halves:
        if n is None: A(f"v_mov_b32 v{d}, 0\nv_mov_b32 v{d+1}, 0"); continue
        A(f"s_waitcnt lgkmcnt({min(W-1,NR-1-n)})\nv_cvt_pk_bf16_f32 v{d}, v{ST+4*n}, v{ST+4*n+1}\nv_cvt_pk_bf16_f32 v{d+1}, v{ST+4*n+2}, v{ST+4*n+3}")
        if n+W<NR: A(f"ds_read_b128 {q(ST+4*(n+W))}, v{ST+4*(n+W)}")
    stamp(A,'c')
    M=[];V=[]
    for m in range(4):
        last={};first={}
        for f,(k,p,T) in enumerate(frags):
            d=DEN+4*p if k=='z' else D+4*p
            M.append((f"s_waitcnt vmcnt({45-5*m})\n" if f==0 else "")+mf(q(d),q(FR+4*f),q(20*m+4*T,4,'a'),None if (k,p) in last else "0"))
            first.setdefault((k,p),len(M)-1); last[(k,p)]=len(M)-1
        for gi,g in enumerate(G):
            for r in range(g[1]):
                V.append((last[('z',gi)]+3,first[('z',gi)]+25,f"v_add_f32 v{RC+g[0]+r}, 0x358637bd, v{DEN+4*gi+r}"))
            for r in range(g[1]):
                V.append((last[('z',gi)]+3,first[('z',gi)]+25,f"v_rcp_f32 v{RC+g[0]+r}, v{RC+g[0]+r}"))
        for t in range(10):
            for r in range(4): V.append((last[('t',t)]+3,first[('t',t)]+25,f"v_mul_f32 v{D+4*t+r}, v{D+4*t+r}, v{RC+t}"))
            for p in range(2): V.append((last[('t',t)]+3,first[('t',t)]+25,f"v_cvt_pk_bf16_f32 v{OF+20*m+2*t+p}, v{D+4*t+2*p}, v{D+4*t+2*p+1}"))
    vi=0
    for i,m in enumerate(M):
        while any(v[1]<=i for v in V[vi:]): A(V[vi][2]); vi+=1
        A(m); c=0
        while vi<len(V) and V[vi][0]<=i and c<4: A(V[vi][2]); vi+=1; c+=1
    for v in V[vi:]: A(v[2])
    ACC=16
    for s in range(5):
        A(f"s_waitcnt vmcnt({25-5*s})")
        for m in range(4):
            for t in range(5): A(mf(q(ACC+20*m+4*t),q(80+20*s+4*t,4,'a'),q(OF+20*m+4*s),None if s else "0"))
    stamp(A,2)
    P=100
    reduce_res(A,ACC,lambda k:f"v_accvgpr_read_b32 v15, a{180+k}",P)
    for t in range(5): A(f"buffer_store_dwordx2 {q(P+2*t,2)}, v3, s[40:43], s{50+t} offen")
    A("v_mov_b32 v8, 0\nv_mov_b32 v9, 0\nv_mov_b32 v10, 0x3f803f80")
    for k in range(10): A(f"v_dot2_f32_bf16 v8, v{P+k}, v10, v8\nv_dot2_f32_bf16 v9, v{P+k}, v{P+k}, v9")
    gsum(A,8,10); gsum(A,9,11)
    A(f"""v_cmp_gt_u32 vcc, 16, v0
v_mov_b32 v12, {OOB}
s_lshl_b32 s30, s29, 10
s_lshr_b32 s31, s28, 1
s_lshl_b32 s31, s31, 8
s_add_u32 s30, s30, s31
s_and_b32 s31, s28, 1
s_lshl_b32 s31, s31, 3
s_add_u32 s30, s30, s31
s_add_u32 s30, s30, {HST}
v_cndmask_b32 v12, v12, v3, vcc
buffer_store_dwordx2 v[8:9], v12, s[40:43], s30 offen""")
    stamp(A,'d'); stamp_out(A,1,"L2end")
    A("L2end:\ns_endpgm")
    return A
def k3():
    A=K("k3_kernel",256,512,163840); SL=40960
    entry(A,"L3end")
    A(f"""s_lshr_b32 s27, s26, 3
s_lshr_b32 s28, s25, 1
s_lshl_b32 s28, s28, 2
s_add_u32 s27, s27, s28
s_and_b32 s28, s25, 1
s_lshl_b32 s28, s28, 3
s_and_b32 s29, s26, 7
s_add_u32 s28, s28, s29
v_lshlrev_b32 v3, 4, v0
s_mov_b32 s37, 0
s_mov_b32 s49, {SL}
s_cmp_lt_u32 s24, 4
s_cbranch_scc1 L3comp
s_sub_u32 s32, s24, 4
s_mul_i32 s32, s32, 5
s_lshl_b32 s38, s32, 11
s_lshl_b32 s33, s27, 3
s_mul_i32 s34, s28, 6""")
    for m in range(5):
        A(f"""s_add_u32 s35, s32, {m}
s_sub_u32 s36, s35, 8
s_mov_b32 s39, {FG}
s_cmp_ge_u32 s35, 14
s_cselect_b32 s39, {FU}, s39
s_cselect_b32 s48, 6, 0
s_sub_u32 s36, s36, s48
s_cmp_ge_u32 s36, 3
s_addc_u32 s36, s36, 0
s_cmp_eq_u32 s36, 6
s_cselect_b32 s36, 3, s36
s_add_u32 s36, s36, s34
s_add_u32 s48, s35, s33
s_cmp_lt_u32 s35, 8
s_cselect_b32 s36, s48, s36
s_cselect_b32 s39, {HF}, s39
s_mul_i32 s36, s36, 20480
s_add_u32 s{50+m}, s36, s39""")
    A(f"""v_cmp_le_u32 vcc, 24, v0
v_mov_b32 v4, {6144-384}
v_cndmask_b32 v4, 0, v4, vcc
v_add_u32 v4, v4, v3
s_mul_i32 s35, s28, 384
s_add_u32 s35, s35, {CSP}
s_waitcnt lgkmcnt(0)""")
    srd(A,40,22,0x2000000)
    for k in range(5): A(f"buffer_load_dwordx4 {q(8+4*k)}, v4, s[40:43], s35 offen\ns_add_u32 s35, s35, 12288")
    LA=opt('la3',2)
    A(f"""v_mov_b32 v5, v3
L3ld:
s_cmp_lt_u32 s37, {LA}
s_cbranch_scc1 L3is
s_waitcnt vmcnt({10*(LA-1)})
s_barrier
L3is:""")
    for m in range(5): A(f"s_add_u32 m0, s38, {2048*m}\nbuffer_load_dwordx4 v5, s[40:43], s{50+m} offen lds\nbuffer_load_dwordx4 v5, s[40:43], s{50+m} offen offset:1024 lds")
    A(f"""v_add_u32 v5, 2048, v5
s_add_u32 s37, s37, 1
s_and_b32 s48, s37, 3
s_cselect_b32 s48, s49, {-3*SL}
s_add_u32 s38, s38, s48
s_cmp_lt_u32 s37, 10
s_cbranch_scc1 L3ld""")
    A(f"""s_and_b32 s35, s25, 1
s_mul_i32 s35, s35, 983040
s_lshl_b32 s36, s26, 2
s_add_u32 s36, s36, s24
s_sub_u32 s36, s36, 4
s_mul_i32 s36, s36, 7680
s_add_u32 s35, s35, s36
s_add_u32 s35, s35, {FD}
v_lshlrev_b32 v6, 7, v0""")
    PF=opt('pf3',1)
    if PF: A("buffer_load_dword v7, v6, s[40:43], s35 offen")
    for k in range(1,5): A(f"v_pk_add_f32 v[8:9], v[8:9], {q(8+4*k,2)}\nv_pk_add_f32 v[10:11], v[10:11], {q(10+4*k,2)}")
    for i in range(LA-1,-1,-1): A(f"s_waitcnt vmcnt({10*i+PF})\ns_barrier")
    A("""ds_write_b128 v3, v[8:11]
s_waitcnt lgkmcnt(0)
s_barrier
s_waitcnt vmcnt(0)
s_endpgm""")
    F=[32,72]; ACC=128; VH,VW=4,5
    A(f"""L3comp:
s_lshr_b32 s30, s24, 1
s_and_b32 s31, s24, 1
s_lshl_b32 s32, s30, 13
v_add_u32 v{VH}, s32, v3
s_mul_i32 s32, s31, 6144
s_add_u32 s32, s32, 16384
v_add_u32 v{VW}, s32, v3
s_lshl_b32 s33, s27, 3
s_lshl_b32 s32, s30, 2
s_add_u32 s33, s33, s32
s_lshl_b32 s34, s33, 10
s_add_u32 s34, s34, {HST}
s_waitcnt lgkmcnt(0)""")
    srd(A,40,22,0x2000000)
    stamp(A,'a')
    for m in range(4): A(f"buffer_load_dwordx4 {q(8+4*m)}, v3, s[40:43], s34 offen offset:{1024*m}")
    for r in range(ACC,ACC+96): A(f"v_mov_b32 v{r}, 0")
    A(f"""s_mul_i32 s33, s33, 48
s_mul_i32 s32, s28, 3
s_add_u32 s33, s33, s32
s_lshl_b32 s33, s33, 10
s_add_u32 s33, s33, {HH}
s_lshl_b32 s32, s31, 11
s_add_u32 s50, s33, s32
s_lshl_b32 s32, s31, 3
s_add_u32 s51, s33, s32
s_add_u32 s51, s51, 1024
s_lshl_b32 s32, s31, 8
v_lshl_add_u32 v6, v1, 4, s32
s_lshl_b32 s32, s31, 6
v_lshl_add_u32 v7, v1, 4, s32
s_mov_b32 s52, 0x3acccccd
s_waitcnt vmcnt(0)""")
    for m in range(4):
        b=8+4*m
        A(f"v_pk_add_f32 {q(b,2)}, {q(b,2)}, {q(b+2,2)}"); gsum(A,b,b+2); gsum(A,b+1,b+3)
        A(f"""v_mul_f32 v{b}, s52, v{b}
v_mul_f32 v{b+1}, s52, v{b+1}
v_fma_f32 v{b+1}, -v{b}, v{b}, v{b+1}
v_max_f32 v{b+1}, 0, v{b+1}
v_add_f32 v{b+1}, 0x3727c5ac, v{b+1}
v_rcp_f32 v{b+1}, v{b+1}
v_xor_b32 v{b}, 0x80000000, v{b}""")
    def reads(k,s):
        L=[f"ds_read_b128 {q(F[k]+4*m)}, v{VH} offset:{2048*m+1024*s}" for m in range(4)]
        L+=[f"ds_read_b128 {q(F[k]+16+4*n)}, v{VW} offset:{2048*(n%3)+12288*(n//3)+1024*s}" for n in range(6)]
        return L
    def mms(k): return [mf(q(ACC+24*m+4*n),q(F[k]+16+4*n),q(F[k]+4*m)) for n in range(6) for m in range(4)]
    stamp(A,'b'); A("s_barrier"); stamp(A,1)
    for l in reads(0,0): A(l)
    A(".p2align 6\nL3m:\ns_waitcnt lgkmcnt(0)")
    for l in weave(mms(0),reads(1,1),1): A(l)
    A(f"s_add_u32 s37, s37, 1\ns_and_b32 s48, s37, 3\ns_cselect_b32 s48, s49, {-3*SL}\nv_add_u32 v{VH}, s48, v{VH}\nv_add_u32 v{VW}, s48, v{VW}\ns_waitcnt lgkmcnt(0)\ns_barrier")
    for l in weave(mms(1),reads(0,0),1): A(l)
    A("s_cmp_lt_u32 s37, 10\ns_cbranch_scc1 L3m"); stamp(A,2)
    A("s_waitcnt lgkmcnt(0)")
    for n in range(6): A(f"ds_read_b128 {q(32+4*n)}, v{7 if n%3==2 else 6} offset:{64*(n%3)+384*(n//3)}")
    A("s_waitcnt lgkmcnt(0)")
    for m in range(4):
        st=q(8+4*m,2); d=64+6*m
        for n in range(3):
            for p in range(2):
                g=ACC+24*m+4*n+2*p; u=g+12
                A(f"""v_pk_fma_f32 {q(g,2)}, {st}, {q(32+4*n+2*p,2)}, {q(g,2)} op_sel_hi:[0,1,1]
v_pk_fma_f32 {q(u,2)}, {st}, {q(44+4*n+2*p,2)}, {q(u,2)} op_sel_hi:[0,1,1]
v_max_f32 v{g}, 0, v{g}
v_max_f32 v{g+1}, 0, v{g+1}
v_pk_mul_f32 {q(u,2)}, {q(u,2)}, {st} op_sel:[0,1]
v_pk_mul_f32 {q(g,2)}, {q(g,2)}, {q(u,2)}
v_cvt_pk_bf16_f32 v{d+2*n+p}, v{g}, v{g+1}""")
        A(f"buffer_store_dwordx4 {q(d)}, v3, s[40:43], s50 offen\nbuffer_store_dwordx2 {q(d+4,2)}, v3, s[40:43], s51 offen\ns_add_u32 s50, s50, 49152\ns_add_u32 s51, s51, 49152")
    stamp(A,'d'); stamp_out(A,2,"L3end")
    A("L3end:\ns_endpgm")
    return A
def k4():
    A=K("k4_kernel",256,256,81920,512,256)
    entry(A,"L4end"); map64(A)
    A(f"""s_mul_i32 s34, s24, 12288
s_mul_i32 s35, s27, {4*49152}
s_add_u32 s35, s35, s34
s_mul_i32 s36, s28, {5*49152}
s_add_u32 s36, s36, s34
s_and_b32 s37, s27, 7
s_mul_i32 s37, s37, {opt('r4a',0)}
s_lshr_b32 s37, s37, 1
s_and_b32 s38, s28, 3
s_mul_i32 s38, s38, {opt('r4b',0)}
s_add_u32 s37, s37, s38
s_cmp_ge_u32 s37, 12
s_cselect_b32 s38, 12, 0
s_sub_u32 s37, s37, s38
s_lshl_b32 s37, s37, 10
v_add_u32 v7, s37, v3""")
    for m in range(4): A(f"s_add_u32 s{60+m}, s35, {HH+m*49152}")
    for t in range(5): A(f"s_add_u32 s{64+t}, s36, {FD+t*49152}")
    A("s_waitcnt lgkmcnt(0)")
    srd(A,40,22,0x2000000); srd(A,44,18,2621440)
    stamp(A,'a')
    def loads(s):
        L=[f"buffer_load_dwordx4 {q(36*(s%7)+4*n,4,'a')}, v7, s[40:43], s{60+n} offen" for n in (0,4,5,6,7,8,1,2,3)]
        L[-1]+="\ns_add_u32 s37, s37, 1024\ns_cmp_eq_u32 s37, 12288\ns_cselect_b32 s37, 0, s37\nv_add_u32 v7, s37, v3"
        return L
    LA=opt('la4',2)
    for s in range(LA):
        for l in loads(s): A(l)
    hoffs(A,50); stamp(A,'b')
    ACC=16
    for s in range(12):
        A(f"s_waitcnt vmcnt({9*min(LA-1,11-s)+(5 if s>12-LA else 0)})")
        if s==0: stamp(A,1)
        b=36*(s%7)
        M=[mf(q(ACC+20*m+4*t),q(b+16+4*t,4,'a'),q(b+4*m,4,'a'),None if s else "0") for m in range(4) for t in range(5)]
        fill=loads(s+LA) if s<12-LA else [f"buffer_load_dwordx2 {q(112+2*t,2)}, v3, s[40:43], s{50+t} offen" for t in range(5)] if s==12-LA else []
        for l in weave(M,fill,1): A(l)
    stamp(A,2)
    P=100
    reduce_res(A,ACC,lambda k:f"v_mov_b32 v15, v{112+k}",P)
    A(f"""v_mul_u32_u24 v14, 1280, v2
v_lshl_add_u32 v14, v1, 3, v14
s_mul_i32 s30, s29, 20480
s_mul_i32 s31, s28, 160
s_add_u32 s30, s30, s31""")
    for t in range(5): A(f"buffer_store_dwordx2 {q(P+2*t,2)}, v14, s[44:47], s30 offen offset:{32*t}")
    stamp(A,'d'); stamp_out(A,3,"L4end")
    A("L4end:\ns_endpgm")
    return A
```

```python
import sys
from asmlib import *
STAMP = 'stamp' in sys.argv
PQ,KVS,CSP,HST,HF,HH,FWO,FG,FU,FD = 0,0x300000,0x320000,0x340000,0x400000,0x800000,0x1000000,0x1100000,0x1300000,0x1500000
OOB=0x40000000
MF="v_mfma_f32_16x16x32_bf16"
def mf(d,a,b,c=None):
    return f"{MF} {d}, {a}, {b}, {d if c is None else c}"
SM={'0':0,'1':1,'2':2}
for a in sys.argv:
    if a.startswith('S='): SM={'0':0,a[2]:1,a[3]:2}
def stamp(A,i):
    i=str(i)
    if STAMP and i in SM: A(f"s_memrealtime s[{90+2*SM[i]}:{91+2*SM[i]}]"+("\ns_waitcnt lgkmcnt(0)" if i!='0' else ""))
def stamp_out(A,k,lab):
    if not STAMP: return
    A(f"""s_waitcnt vmcnt(0)
s_memrealtime s[96:97]
s_cmp_lg_u32 s24, 0
s_cbranch_scc1 {lab}
s_waitcnt lgkmcnt(0)
s_add_u32 s22, s22, {0x8000000+k*32768}
s_addc_u32 s23, s23, 0
s_lshl_b32 s26, s2, 5""")
    for i in range(8): A(f"v_mov_b32 v{4+i}, s{90+i}")
    A("v_mov_b32 v1, s26\nglobal_store_dwordx4 v1, v[4:7], s[22:23]\nglobal_store_dwordx4 v1, v[8:11], s[22:23] offset:16")
def entry(A,end):
    A(f"s_cmp_ge_u32 s2, 256\ns_cbranch_scc1 {end}")
    stamp(A,0)
    A("""s_load_dwordx16 s[4:19], s[0:1], 0
s_load_dwordx4 s[20:23], s[0:1], 64
v_lshrrev_b32 v1, 6, v0
v_and_b32 v0, 63, v0
v_readfirstlane_b32 s24, v1
v_lshrrev_b32 v1, 4, v0
v_and_b32 v2, 15, v0
s_and_b32 s25, s2, 7
s_lshr_b32 s26, s2, 3""")
def srd(A,b,p,n,off=None):
    if off is None: A(f"s_mov_b32 s{b}, s{p}\ns_mov_b32 s{b+1}, s{p+1}")
    else: A(f"s_add_u32 s{b}, s{p}, {off}\ns_addc_u32 s{b+1}, s{p+1}, 0")
    A(f"s_mov_b32 s{b+2}, {n}\ns_mov_b32 s{b+3}, 0x20000")
def gsum(A,r,t):
    for p in ("32","16"):
        A(f"v_mov_b32 v{t}, v{r}\nv_permlane{p}_swap_b32 v{r}, v{t}\nv_add_f32 v{r}, v{r}, v{t}")
def opt(n,d):
    for a in sys.argv:
        if a.startswith(n+'='): return int(a[len(n)+1:])
    return d
PAIRS=[(a,b) for a in range(5) for b in range(5) if {x//5 for x in range(4*a,4*a+4)}&{x//5 for x in range(4*b,4*b+4)}]

def k1():
    A=K("k1_kernel",256,512,147456); SL=36864
    entry(A,"L1end")
    A("""s_cmp_ge_u32 s26, 24
s_cbranch_scc1 L1help
s_mul_i32 s27, s26, 43
s_lshr_b32 s27, s27, 8
s_mul_i32 s28, s27, 6
s_sub_u32 s28, s26, s28
s_lshr_b32 s29, s25, 1
s_lshl_b32 s29, s29, 2
s_add_u32 s27, s27, s29
s_and_b32 s29, s25, 1
s_lshl_b32 s30, s29, 2
s_add_u32 s30, s30, s28
s_lshl_b32 s31, s29, 1
s_add_u32 s31, s31, s28
s_sub_u32 s31, s31, 4
s_cmp_lt_u32 s24, 4
s_cbranch_scc1 L1comp""")
    A("""s_sub_u32 s32, s24, 4
s_and_b32 s33, s32, 1
s_lshl_b32 s33, s33, 2
v_add_u32 v3, s33, v1
v_and_b32 v4, 7, v0
v_xor_b32 v3, v3, v4
v_lshrrev_b32 v4, 3, v0
v_mul_u32_u24 v4, 1280, v4
v_lshl_add_u32 v10, v3, 4, v4
s_mul_i32 s34, s30, 160
s_add_u32 s34, s34, 1280
s_mul_i32 s35, s31, 320
s_cmp_lt_u32 s28, 4
s_cselect_b32 s34, s34, s35
s_cselect_b32 s35, 1120, 0
s_mul_i32 s36, s32, 61440
s_add_u32 s34, s34, s36
s_lshl_b32 s36, s27, 7
s_lshl_b32 s37, s32, 3
s_add_u32 s36, s36, s37
s_mul_i32 s36, s36, 1280
v_mov_b32 v9, s35""")
    for m in range(5):
        A(f"""v_add_u32 v3, {64*m}, v0
v_mul_u32_u24 v4, 3277, v3
v_lshrrev_b32 v4, 16, v4
v_mul_u32_u24 v5, 20, v4
v_sub_u32 v5, v3, v5
v_lshrrev_b32 v6, 2, v4
v_and_b32 v6, 2, v6
v_xor_b32 v5, v5, v6
v_cmp_le_u32 vcc, 10, v5
v_mul_u32_u24 v4, 3840, v4
v_lshl_add_u32 v4, v5, 4, v4
v_cndmask_b32 v6, 0, v9, vcc
v_add_u32 v{11+m}, v4, v6""")
    A("""s_lshl_b32 s38, s32, 10
s_mul_i32 s39, s32, 5120
s_add_u32 s39, s39, 16384
s_mov_b32 s37, 0
s_waitcnt lgkmcnt(0)""")
    srd(A,40,4,2621440); srd(A,44,6,2457600)
    LA=opt('la1',2)
    A(f"""s_and_b32 s50, s27, 3
s_mul_i32 s50, s50, {opt('r1a',15)}
s_mul_i32 s51, s28, {opt('r1b',10)}
s_add_u32 s50, s50, s51
s_lshr_b32 s51, s25, 1
s_mul_i32 s51, s51, {opt('r1c',4)}
s_add_u32 s50, s50, s51
s_mul_i32 s50, s50, 43
s_lshr_b32 s50, s50, 8
s_cmp_ge_u32 s50, 10
s_cselect_b32 s51, 10, 0
s_sub_u32 s50, s50, s51
s_lshl_b32 s51, s50, 7
s_add_u32 s36, s36, s51
s_mul_i32 s51, s50, 245760
s_add_u32 s34, s34, s51
L1ld:
s_cmp_lt_u32 s37, {LA}
s_cbranch_scc1 L1is
s_waitcnt vmcnt({9*(LA-1)})
s_barrier
L1is:""")
    for m in range(5):
        A(f"s_add_u32 m0, s39, {m*1024}\ns_add_u32 s48, s36, {m*40960}\nbuffer_load_dwordx4 v{11+m}, s[44:47], s34 offen lds")
        if m<4: A(f"s_add_u32 m0, s38, {m*4096}\ns_nop 0\nbuffer_load_dwordx4 v10, s[40:43], s48 offen lds")
    A(f"""s_add_u32 s36, s36, 128
s_add_u32 s34, s34, 245760
s_add_u32 s50, s50, 1
s_cmp_eq_u32 s50, 10
s_cselect_b32 s48, 1280, 0
s_cselect_b32 s51, 2457600, 0
s_sub_u32 s36, s36, s48
s_sub_u32 s34, s34, s51
s_add_u32 s37, s37, 1
s_mov_b32 s49, {SL}
s_and_b32 s48, s37, 3
s_cselect_b32 s48, s49, {-3*SL}
s_add_u32 s38, s38, s48
s_add_u32 s39, s39, s48
s_cmp_lt_u32 s37, 10
s_cbranch_scc1 L1ld""")
    for i in range(LA-1,-1,-1): A(f"s_waitcnt vmcnt({9*i})\ns_barrier")
    A("s_barrier\ns_endpgm")
    XA0,XA1,WE,WO,ONE,ACC,RS,GR,CS,AD=4,5,6,7,28,128,208,216,224,236
    F=[32,80]
    A(f"""L1comp:
s_lshl_b32 s32, s24, 12
v_lshrrev_b32 v3, 1, v2
v_xor_b32 v3, v3, v1
v_lshlrev_b32 v3, 4, v3
v_lshl_add_u32 v3, v2, 7, v3
v_add_u32 v{XA0}, s32, v3
v_xor_b32 v{XA1}, 64, v{XA0}
v_lshrrev_b32 v3, 2, v2
v_lshl_add_u32 v3, v1, 3, v3
v_mul_u32_u24 v3, 320, v3
v_and_b32 v8, 3, v0
v_lshl_add_u32 v3, v8, 3, v3
v_add_u32 v3, 16384, v3
v_and_b32 v8, 1, v1
v_lshlrev_b32 v8, 5, v8
v_add_u32 v{WE}, v3, v8
v_sub_u32 v{WO}, v3, v8
s_waitcnt lgkmcnt(0)""")
    stamp(A,'a')
    srd(A,40,22,0x2000000)
    A("s_mul_i32 s33, s30, 6720\ns_add_u32 s33, s33, %d"%KVS); srd(A,44,22,6720,"s33")
    A(f"""s_lshl_b32 s34, s30, 2
v_mov_b32 v9, s34
s_cmp_ge_u32 s28, 4
s_cbranch_scc1 L1nz
s_cmp_lg_u32 s24, 0
s_cbranch_scc1 L1nz
v_mov_b32 v10, 1
s_mov_b64 exec, 1
global_atomic_add v11, v9, v10, s[20:21] sc0
s_waitcnt vmcnt(0)
v_readfirstlane_b32 s35, v11
s_mov_b64 exec, -1
s_cmp_lg_u32 s35, 0
s_cbranch_scc1 L1nz
v_lshlrev_b32 v11, 4, v0
v_mov_b32 v12, 0
v_mov_b32 v13, 0
v_mov_b32 v14, 0
v_mov_b32 v15, 0
v_add_u32 v16, 4096, v11""")
    for n in range(7): A(f"buffer_store_dwordx4 v[12:15], v{11 if n<4 else 16}, s[44:47], 0 offen offset:{(n%4)*1024} sc1")
    A("""s_waitcnt vmcnt(0)
s_mov_b64 exec, 1
global_store_dword v9, v10, s[20:21] offset:128 sc1
s_mov_b64 exec, -1
L1nz:""")
    for r in range(4): A(f"v_mov_b32 v{ONE+r}, 0x3f803f80")
    for r in range(ACC,AD): A(f"v_mov_b32 v{r}, 0")
    A("s_lshl_b32 s33, s24, 13\ns_add_u32 s33, s33, 4096\nv_lshl_add_u32 v10, v0, 4, s33\nv_add_u32 v10, 6784, v10")
    for dt in range(5):
        A(f"""v_add_u32 v11, {4*dt}, v1
v_mul_u32_u24 v12, 52, v11
v_lshrrev_b32 v12, 8, v12
v_mul_u32_u24 v12, 20, v12
v_sub_u32 v12, v2, v12
v_mul_u32_u24 v11, 336, v11
v_add_u32 v11, s33, v11
v_cmp_eq_u32 vcc, 0, v2
v_add_u32 v13, 320, v11
v_cndmask_b32 v{AD+13+dt}, v10, v13, vcc""")
        for n,(a,b) in enumerate(PAIRS):
            if a==dt: A(f"v_add_u32 v13, {16*b}, v12\nv_cmp_gt_u32 vcc, 20, v13\nv_lshl_add_u32 v13, v13, 4, v11\nv_cndmask_b32 v{AD+n}, v10, v13, vcc")
    def reads(k,s):
        L=[f"ds_read_b128 {q(F[k]+4*rt)}, v{XA1 if s else XA0} offset:{2048*rt}" for rt in range(2)]
        for t in range(10):
            for h in range(2): L.append(f"ds_read_b64_tr_b16 {q(F[k]+8+4*t+2*h,2)}, v{WO if t&1 else WE} offset:{32*t+10240*s+1280*h}")
        return L
    def mms(k,isq,w):
        L=[]; x=lambda rt:q(F[k]+4*rt); W=lambda t:q(F[k]+8+4*t)
        for rt in range(2 if not opt('nost',0) else 0):
            L.append(mf(q(GR+4*rt),x(rt),x(rt)))
            L.append(mf(q(RS+4*rt),q(ONE),x(rt)) if isq else mf(q(RS+4*rt),x(rt),q(ONE)))
        for t in range(10):
            for rt in range(2): L.append(mf(q(ACC+40*rt+4*t),W(t),x(rt)) if isq else mf(q(ACC+40*rt+4*t),x(rt),W(t)))
            if t%4==w and not opt('nost',0): L.append(mf(q(CS+4*(t//4)),W(t),q(ONE)))
        return L
    stamp(A,'b')
    A(f"s_mov_b32 s37, 0\ns_mov_b32 s49, {SL}\ns_barrier"); stamp(A,1)
    for l in reads(0,0): A(l)
    A("s_cmp_ge_u32 s28, 4\ns_cselect_b32 s34, 4, 0\ns_add_u32 s34, s34, s24")
    for v in range(7): A(f"s_cmp_eq_u32 s34, {v}\ns_cbranch_scc1 L1m{v}")
    for v in (7,6,5,4,3,2,1,0):
        isq,w=v>=4,v&3
        A(f".p2align 6\nL1m{v}:\ns_waitcnt lgkmcnt(0)")
        for l in weave(mms(0,isq,w),reads(1,1),opt('per1',1)): A(l)
        A(f"s_add_u32 s37, s37, 1\ns_and_b32 s48, s37, 3\ns_cselect_b32 s48, s49, {-3*SL}")
        for r in (XA0,XA1,WE,WO): A(f"v_add_u32 v{r}, s48, v{r}")
        A("s_waitcnt lgkmcnt(0)\ns_barrier")
        for l in weave(mms(1,isq,w),reads(0,0),opt('per1',1)): A(l)
        A(f"s_cmp_lt_u32 s37, 10\ns_cbranch_scc1 L1m{v}")
        if v: A("s_branch L1epi")
    A("L1epi:\ns_nop 7"); stamp(A,2)
    A("s_lshl_b32 s33, s24, 6\nv_lshl_add_u32 v8, v1, 4, s33\ns_waitcnt lgkmcnt(0)")
    for n in range(3): A(f"ds_write_b128 v8, {q(CS+4*n)} offset:{256*n}")
    A("s_mov_b32 s50, 0x3acccccd\ns_mov_b32 s51, 0x3fb8aa3b\ns_mov_b32 s52, 0x358637bd\ns_mov_b32 s53, 0x358637bd\ns_cmp_ge_u32 s28, 4\ns_cbranch_scc1 L1q")
    def stats(rs,sq,rl):
        A(f"""v_mul_f32 v{rs}, s50, v{rs}
v_mul_f32 v{sq}, s50, v{sq}
v_fma_f32 v{sq}, -v{rs}, v{rs}, v{sq}
v_max_f32 v{sq}, 0, v{sq}
v_add_f32 v{sq}, 0x3727c5ac, v{sq}
v_rsq_f32 v{sq}, v{sq}
v_xor_b32 v{rs}, 0x80000000, v{rs}
v_mul_f32 v{rl}, s51, v{sq}""")
    def phi(a,t,rstd,rl,sel):
        A(f"""v_pk_mul_f32 {q(t,2)}, {q(a,2)}, {rl} {sel[0]}
v_pk_fma_f32 {q(a,2)}, {q(a,2)}, {rstd}, s[52:53] {sel[1]}
v_exp_f32_e64 v{t}, v{t} clamp
v_exp_f32_e64 v{t+1}, v{t+1} clamp
v_max_f32 v{a}, s52, v{a}
v_max_f32 v{a+1}, s52, v{a+1}
v_pk_add_f32 {q(a,2)}, {q(a,2)}, {q(t,2)}""")
    A("global_load_dword v27, v9, s[20:21] offset:128 sc1\nv_mul_u32_u24 v8, 80, v1")
    for rt in range(2):
        for r in range(4): A(f"ds_bpermute_b32 v{GR+4*rt+r}, v8, v{GR+4*rt+r} offset:{4*r}")
    A("s_waitcnt lgkmcnt(0)\ns_barrier\nv_lshlrev_b32 v8, 2, v2")
    for t in range(10): A(f"ds_read_b32 v{32+t}, v8 offset:{64*t}")
    for r in range(8): stats(RS+r,GR+r,CS+r)
    A("s_waitcnt lgkmcnt(0)")
    FR=48
    for t in range(10):
        cs=q(32+(t&~1),2); o=t&1
        for rt in range(2):
            for p in range(2):
                a=ACC+40*rt+4*t+2*p; rr=4*rt+2*p
                A(f"v_pk_fma_f32 {q(a,2)}, {q(RS+rr,2)}, {cs}, {q(a,2)} op_sel:[0,{o},0] op_sel_hi:[1,{o},1]")
                if t<5: phi(a,10+2*p,q(GR+rr,2),q(CS+rr,2),("",""))
                else: A(f"v_pk_mul_f32 {q(a,2)}, {q(a,2)}, {q(GR+rr,2)}")
                A(f"v_cvt_pk_bf16_f32 v{FR+4*t+2*rt+p}, v{a}, v{a+1}")
    for n,(a,b) in enumerate(PAIRS): A(mf(q(ACC+4*n),q(FR+4*a),q(FR+20+4*b),"0"))
    for a in range(5): A(mf(q(ACC+52+4*a),q(FR+4*a),q(ONE),"0"))
    for n in range(18): A(f"ds_write_b128 v{AD+n}, {q(ACC+4*n)}")
    stamp(A,'c')
    A("""L1poll:
s_waitcnt vmcnt(0)
v_readfirstlane_b32 s35, v27
s_cmp_lg_u32 s35, 0
s_cbranch_scc1 L1go
global_load_dword v27, v9, s[20:21] offset:128 sc1
s_branch L1poll
L1go:
s_lshl_b32 s33, s24, 8
v_lshl_add_u32 v8, v0, 2, s33
v_add_u32 v10, 4096, v8
s_waitcnt lgkmcnt(0)
s_barrier""")
    for n in range(7):
        A(f"ds_read2st64_b32 {q(32+4*n,2)}, v10 offset0:{4*n} offset1:{4*n+32}\nds_read2st64_b32 {q(34+4*n,2)}, v10 offset0:{4*n+64} offset1:{4*n+96}")
    for n in range(7):
        b=32+4*n
        A(f"s_waitcnt lgkmcnt({12-2*n})\nv_pk_add_f32 {q(b,2)}, {q(b,2)}, {q(b+2,2)}\nv_add_f32 v{b}, v{b}, v{b+1}\nbuffer_atomic_add_f32 v{b}, v{8 if n<4 else 10}, s[44:47], 0 offen offset:{(n%4)*1024}")
    A("s_branch L1fin")
    A("L1q:\nv_and_b32 v8, 3, v0\nv_lshrrev_b32 v10, 2, v2\nv_lshl_add_u32 v10, v10, 4, v2\nv_lshlrev_b32 v10, 2, v10")
    for r in (1,2,3):
        A(f"v_cmp_eq_u32 vcc, {r}, v8")
        for rt in range(2): A(f"v_cndmask_b32 v{GR+4*rt}, v{GR+4*rt}, v{GR+4*rt+r}, vcc")
    for rt in range(2): A(f"ds_bpermute_b32 v{GR+4*rt}, v10, v{GR+4*rt}")
    A("s_waitcnt lgkmcnt(0)\ns_barrier\nv_lshlrev_b32 v8, 4, v1")
    for t in range(10): A(f"ds_read_b128 {q(32+4*t)}, v8 offset:{64*t}")
    for rt in range(2): stats(RS+4*rt,GR+4*rt,CS+4*rt)
    A(f"""s_lshl_b32 s33, s27, 3
s_lshl_b32 s34, s24, 1
s_add_u32 s33, s33, s34
s_mul_i32 s33, s33, 20
s_mul_i32 s34, s31, 5
s_add_u32 s33, s33, s34
s_lshl_b32 s33, s33, 10
v_lshlrev_b32 v8, 4, v0
s_waitcnt lgkmcnt(0)""")
    for rt in range(2):
        for t in range(10):
            d=80+4*((t//2)%2)+8*rt
            for p in range(2):
                a=ACC+40*rt+4*t+2*p
                A(f"v_pk_fma_f32 {q(a,2)}, {q(RS+4*rt,2)}, {q(32+4*t+2*p,2)}, {q(a,2)} op_sel_hi:[0,1,1]")
                phi(a,10+2*p,q(GR+4*rt,2),q(CS+4*rt,2),("op_sel_hi:[1,0]","op_sel_hi:[1,0,1]"))
                A(f"v_cvt_pk_bf16_f32 v{d+2*(t&1)+p}, v{a}, v{a+1}")
            if t&1: A(f"s_add_u32 s34, s33, {PQ+rt*20480+(t//2)*1024}\nbuffer_store_dwordx4 {q(d)}, v8, s[40:43], s34 offen")
    A("s_branch L1fin")
    A(f"""L1help:
s_sub_u32 s26, s26, 24
s_lshl_b32 s26, s26, 3
s_add_u32 s26, s26, s25
s_lshl_b32 s27, s24, 6
s_add_u32 s27, s27, s26
s_cmp_ge_u32 s27, 410
s_cbranch_scc1 L1end
s_mul_i32 s28, s27, 547
s_lshr_b32 s28, s28, 16
s_mul_i32 s29, s28, 120
s_sub_u32 s29, s27, s29
s_mov_b32 s31, 13108
s_mov_b32 s46, 1966080
s_mov_b32 s34, 1280
s_cmp_eq_u32 s28, 2
s_cselect_b32 s30, 12, 5
s_cselect_b32 s31, 5462, s31
s_cselect_b32 s32, 48, 20
s_mul_i32 s31, s29, s31
s_lshr_b32 s31, s31, 16
s_mul_i32 s30, s31, s30
s_sub_u32 s30, s29, s30
s_waitcnt lgkmcnt(0)
s_mov_b32 s44, s12
s_mov_b32 s45, s13
s_mov_b32 s33, {FG}
s_cmp_eq_u32 s28, 1
s_cselect_b32 s44, s14, s44
s_cselect_b32 s45, s15, s45
s_cselect_b32 s33, {FU}, s33
s_cmp_eq_u32 s28, 2
s_cselect_b32 s44, s16, s44
s_cselect_b32 s45, s17, s45
s_cselect_b32 s33, {FD}, s33
s_cmp_eq_u32 s28, 3
s_cselect_b32 s44, s8, s44
s_cselect_b32 s45, s9, s45
s_cselect_b32 s33, {FWO}, s33
s_cselect_b32 s46, 819200, s46
s_mov_b32 s47, 0x20000
s_cmp_lt_u32 s28, 2
s_cselect_b32 s34, 3072, s34
v_lshrrev_b32 v3, 3, v0
v_mul_lo_u32 v3, v3, s34
v_and_b32 v4, 7, v0
v_lshl_add_u32 v3, v4, 4, v3
s_mul_i32 s35, s30, s34
s_add_u32 s35, s35, s31
s_lshl_b32 s35, s35, 7
s_lshl_b32 s36, s34, 3
s_lshl_b32 s37, s24, 14
s_mov_b32 m0, s37
s_mov_b32 s38, 0
L1hl:
buffer_load_dwordx4 v3, s[44:47], s35 offen lds
s_add_u32 m0, m0, 1024
s_add_u32 s35, s35, s36
s_add_u32 s38, s38, 1
s_waitcnt vmcnt({opt('hd',4)})
s_cmp_lt_u32 s38, 16
s_cbranch_scc1 L1hl""")
    srd(A,40,22,0x2000000)
    A(f"""v_lshrrev_b32 v3, 2, v0
v_lshlrev_b32 v3, 7, v3
v_and_b32 v4, 3, v0
v_lshl_add_u32 v3, v4, 3, v3
v_add_u32 v3, s37, v3
v_lshlrev_b32 v4, 4, v0
s_mul_i32 s35, s31, s32
s_add_u32 s35, s35, s30
s_lshl_b32 s35, s35, 12
s_add_u32 s35, s35, s33
s_lshl_b32 s36, s32, 10
v_lshlrev_b32 v5, 4, v1
v_cmp_eq_u32 vcc, 0, v2
v_mov_b32 v6, {OOB}
v_cndmask_b32 v5, v6, v5, vcc
s_mul_i32 s38, s30, 12288
s_mul_i32 s39, s28, 6144
s_add_u32 s38, s38, s39
s_lshl_b32 s39, s31, 8
s_add_u32 s38, s38, s39
s_add_u32 s38, s38, {CSP}""")
    for r in range(4): A(f"v_mov_b32 v{ONE+r}, 0x3f803f80")
    A("s_waitcnt vmcnt(0)")
    for t in range(4):
        for s in range(4):
            for h in range(2): A(f"ds_read_b64_tr_b16 {q(32+16*t+4*s+2*h,2)}, v3 offset:{4096*s+2048*h+32*t}")
        if t:
            A("s_waitcnt lgkmcnt(8)")
            for s in range(4): A(f"buffer_store_dwordx4 {q(32+16*(t-1)+4*s)}, v4, s[40:43], s35 offen offset:{1024*s}")
            A("s_add_u32 s35, s35, s36")
    A("s_waitcnt lgkmcnt(0)")
    for s in range(4): A(f"buffer_store_dwordx4 {q(32+48+4*s)}, v4, s[40:43], s35 offen offset:{1024*s}")
    A("s_cmp_ge_u32 s28, 2\ns_cbranch_scc1 L1fin")
    for s in range(4):
        for t in range(4): A(mf(q(8+4*t),q(32+16*t+4*s),q(ONE),None if s else "0"))
    for t in range(4): A(f"buffer_store_dwordx4 {q(8+4*t)}, v5, s[40:43], s38 offen offset:{64*t}")
    A("L1fin:"); stamp(A,'d'); stamp_out(A,0,"L1end")
    A("L1end:\ns_endpgm")
    return A
if __name__=="__main__":
    from gen2 import k2,k3,k4
    ks=[k1(),k2(),k3(),k4()]
    if 'dup' in sys.argv:
        import re,copy
        n=[]
        for i in (0,1,2,3):
            d=copy.copy(ks[i]); d.name=f"d{i}_kernel"
            d.L=[re.sub(r"\bL(\d)",r"M\1",l).replace(str(0x8000000+i*32768),str(0x8000000+(i+4)*32768)) for l in d.L]
            n+=[ks[i],d]
        ks=n
    if 'empty' in sys.argv:
        for i in range(4):
            e=K(f"e{i}_kernel",256,256,0,64,64); e("s_endpgm"); ks.append(e)
    for a in sys.argv:
        if a.startswith('spin'):
            kk,jj=int(a[4]),int(a[5])
            e=K("sp_kernel",1,64,0,64,64)
            e(f'''s_cmp_ge_u32 s2, 1
s_cbranch_scc1 Lse
s_load_dwordx2 s[22:23], s[0:1], 72
s_memrealtime s[8:9]
v_mov_b32 v1, {0x8000000+kk*32768+jj*8}
s_waitcnt lgkmcnt(0)
global_load_dword v2, v1, s[22:23]
s_waitcnt vmcnt(0)
v_readfirstlane_b32 s10, v2
Lsp:
s_memrealtime s[12:13]
s_waitcnt lgkmcnt(0)
s_sub_u32 s14, s12, s8
s_cmp_ge_u32 s14, 20000
s_cbranch_scc1 Lse
s_sub_u32 s14, s12, s10
s_cmp_lt_u32 s14, 10000
s_cbranch_scc1 Lsp
Lse:
s_endpgm''')
            ks.append(e)
    o=emit(ks)
    if 'cyc' in sys.argv: o=o.replace("s_memrealtime","s_memtime")
    print(o,end="")
```
